```python
import torch

def _softmax(x, axis=-1):
    return torch.softmax(x, dim=axis)

def _gelu(x):
    return torch.nn.functional.gelu(x, approximate='tanh')

def _silu(x):
    return torch.nn.functional.silu(x)

def _sigmoid(x):
    return torch.sigmoid(x)

def _layernorm(x, axis=-1, eps=1e-05):
    m = x.mean(dim=axis, keepdim=True)
    v = x.var(dim=axis, keepdim=True, unbiased=False)
    return (x - m) / torch.sqrt(v + eps)

def _scatter_add(tgt, idx, src, axis=0):
    return tgt.clone().index_add_(axis, idx, src)

def _segment_sum(src, seg, n):
    out = torch.zeros((n,) + src.shape[1:], dtype=src.dtype)
    return out.index_add_(0, seg, src)

def _pad(x, pw):
    flat = tuple((v for pair in reversed(pw) for v in pair))
    return torch.nn.functional.pad(x, flat)
kernel_name = 'parallel_sum__softmax_full_mha__mixer_gmlp__prompt'

def setup_inputs():

    _w = lambda a: (lambda t: t.to(torch.bfloat16) if t.is_floating_point() else t)(torch.as_tensor(a))

    def _A_setup():
        B, S, D = (1, 2048, 512)
        return {'x': _w((lambda *s: torch.randn(*s, dtype=torch.bfloat16) * 0.05)(B, S, D)), 'wqkv': _w((lambda *s: torch.randn(*s, dtype=torch.bfloat16) * 0.2)(D, 3 * D)), 'wo': _w((lambda *s: torch.randn(*s, dtype=torch.bfloat16) * 0.1)(D, D))}
    _A_in = _A_setup()

    def _B_setup():
        B, S, D, F = (1, 2048, 512, 1376)
        Fh = F // 2
        return {'x': _w((lambda *s: torch.randn(*s, dtype=torch.bfloat16) * 0.05)(B, S, D)), 'w_in': _w((lambda *s: torch.randn(*s, dtype=torch.bfloat16) * 0.8)(D, 2 * Fh)), 'w_sp': _w(0.01 * (lambda *s: torch.randn(*s, dtype=torch.bfloat16) * 0.8)(S, S)), 'b_sp': _w(1.0 + 0.01 * (lambda *s: torch.randn(*s, dtype=torch.bfloat16) * 0.1)(S)), 'w_out': _w((lambda *s: torch.randn(*s, dtype=torch.bfloat16) * 0.1)(Fh, D))}
    _B_in = _B_setup()
    return {'A_x': _A_in['x'], 'A_wqkv': _A_in['wqkv'], 'A_wo': _A_in['wo'], 'B_x': _B_in['x'], 'B_w_in': _B_in['w_in'], 'B_w_sp': _B_in['w_sp'], 'B_b_sp': _B_in['b_sp'], 'B_w_out': _B_in['w_out']}

def reference(A_x, A_wqkv, A_wo, B_x, B_w_in, B_w_sp, B_b_sp, B_w_out):

    def _A_ref(x, wqkv, wo):
        B, S, D = x.shape
        H = 32
        Dh = D // H
        qkv = (lambda x, *d: x.permute(*d))((x @ wqkv).reshape(B, S, 3, H, Dh), 2, 0, 3, 1, 4)
        q, k, v = (qkv[0], qkv[1], qkv[2])
        scale = Dh ** (-0.5)
        scores = torch.einsum('bhqd,bhkd->bhqk', q, k) * scale
        p = _softmax(scores, axis=-1)
        o = torch.einsum('bhqk,bhkd->bhqd', p, v)
        return (lambda x, *d: x.permute(*d))(o, 0, 2, 1, 3).reshape(B, S, D) @ wo

    def _B_ref(x, w_in, w_sp, b_sp, w_out):
        B, S, D = x.shape
        F = w_in.shape[-1]
        Fh = F // 2
        z = _gelu(torch.einsum('bsd,df->bsf', x, w_in))
        z1 = z[..., :Fh].clone()
        z2 = _layernorm(z[..., Fh:], axis=-1)
        g = torch.einsum('ts,bsf->btf', w_sp, z2) + b_sp[None, :, None]
        return torch.einsum('bsf,fd->bsd', z1 * g, w_out)
    x = A_x
    xn = _layernorm(x, axis=-1)
    return x + _A_ref(xn, A_wqkv, A_wo) + _B_ref(xn, B_w_in, B_w_sp, B_b_sp, B_w_out)
```

```python
import re

class Asm:
    def __init__(self):
        self.lines = []
    def e(self, s):
        for l in s.split("\n"):
            l = l.strip()
            if l:
                self.lines.append(l)
    def c(self, s):
        self.lines.append("; " + s)
    def label(self, n):
        self.lines.append(n + ":")
    def text(self):
        out = []
        for l in self.lines:
            if l.endswith(":") or l.startswith(".") or l.startswith(";"):
                out.append(l)
            else:
                out.append("    " + l)
        return "\n".join(out) + "\n"

def vr(b, n=1):
    return f"v{b}" if n == 1 else f"v[{b}:{b+n-1}]"
def sr(b, n=1):
    return f"s{b}" if n == 1 else f"s[{b}:{b+n-1}]"
def ar(b, n=1):
    return f"a{b}" if n == 1 else f"a[{b}:{b+n-1}]"

_REG = re.compile(r"^(-|abs\()?\s*([vsa])(?:(\d+)|\[(\d+):(\d+)\])\)?$")
def regs_of(tok):
    tok = tok.strip()
    if tok in ("vcc",): return {"vcc"}
    if tok in ("vcc_lo", "vcc_hi"): return {"vcc"}
    if tok in ("exec", "exec_lo", "exec_hi"): return {"exec"}
    if tok == "m0": return {"m0"}
    m = _REG.match(tok)
    if not m: return set()
    k = m.group(2)
    if m.group(3) is not None:
        return {f"{k}{int(m.group(3))}"}
    return {f"{k}{i}" for i in range(int(m.group(4)), int(m.group(5)) + 1)}

TRANS = ("v_exp_f32", "v_log_f32", "v_rcp_f32", "v_rsq_f32", "v_sqrt_f32", "v_sin_f32", "v_cos_f32", "v_exp_f16", "v_rcp_iflag_f32")
class Ins:
    def __init__(self, text, idx):
        self.text = text; self.idx = idx
        t = text.split(";")[0].strip()
        parts = t.split(None, 1)
        self.op = parts[0]
        rest = parts[1] if len(parts) > 1 else ""
        ops = []; depth = 0; cur = ""
        for ch in rest:
            if ch in "[(": depth += 1
            if ch in "])": depth -= 1
            if ch == "," and depth == 0:
                ops.append(cur.strip()); cur = ""
            else:
                cur += ch
        if cur.strip(): ops.append(cur.strip())
        self.mods = ""
        if ops:
            last = ops[-1].split()
            if len(last) > 1:
                ops[-1] = last[0]; self.mods = " ".join(last[1:])
        self.ops = ops
        op = self.op
        self.w = set(); self.r = set()
        self.cls = "other"; self.ws = 1
        self.mfma = None
        R = [regs_of(o) for o in ops]
        base = re.sub(r"_(e32|e64|dpp|sdwa)$", "", op)
        self.base = base
        self.dpp = ("row_" in self.mods or "quad_perm" in self.mods or "wave_" in self.mods or op.endswith("_dpp"))
        if op == "s_nop":
            self.ws = int(ops[0], 0) + 1; self.cls = "nop"
        elif op.startswith("v_mfma"):
            self.cls = "mfma"
            self.w = R[0]; self.A = R[1]; self.B = R[2]; self.C = R[3]
            self.r = R[1] | R[2] | R[3]
            self.passes = 8 if "32x32" in op else 4
        elif op.startswith("v_"):
            self.cls = "valu"
            if base.startswith("v_cmp"):
                self.w = set(R[0]); self.r = set().union(*R[1:])
                if base.startswith("v_cmpx"): self.w |= {"exec"}
            elif base in ("v_readfirstlane_b32", "v_readlane_b32"):
                self.w = set(R[0]); self.r = set().union(*R[1:])
            elif base.startswith("v_permlane") and "swap" in base:
                self.w = R[0] | R[1]; self.r = R[0] | R[1]
            elif base in ("v_add_co_u32", "v_sub_co_u32", "v_addc_co_u32", "v_subb_co_u32", "v_div_scale_f32"):
                self.w = R[0] | R[1]; self.r = set().union(*R[2:])
            else:
                self.w = set(R[0]); self.r = set().union(*R[1:]) if len(R) > 1 else set()
                if base.startswith(("v_fmac", "v_dot2c", "v_mac", "v_pk_fmac", "v_writelane")) or self.dpp or "UNUSED_PRESERVE" in self.mods:
                    self.r |= R[0]
                if base == "v_cndmask_b32" and len(ops) == 3:
                    self.r |= {"vcc"}
            self.trans = base in TRANS
        elif op.startswith("ds_"):
            self.cls = "ds"
            if op.startswith(("ds_read", "ds_bpermute", "ds_permute", "ds_swizzle")) or "_rtn" in op:
                self.w = set(R[0]); self.r = set().union(*R[1:])
            else:
                self.r = set().union(*R)
        elif op.startswith(("buffer_", "global_")):
            self.cls = "vmem"
            self.lds = " lds" in (" " + self.mods) or "_lds_" in op
            if op in ("buffer_wbl2", "buffer_inv"):
                pass
            elif "load" in op and not self.lds:
                self.w = set(R[0]); self.r = set().union(*R[1:])
            elif "atomic" in op and "sc0" in self.mods:
                self.w = set(R[0]); self.r = set().union(*R)
            else:
                self.r = set().union(*R)
                if self.lds: self.r |= {"m0"}
            self.widestore = ("store" in op) and (op.endswith("x3") or op.endswith("x4"))
            if self.widestore:
                self.sdata = R[0] if op.startswith("buffer_") else R[1]
        elif op.startswith("s_"):
            self.cls = "salu"
            if op.startswith(("s_cmp", "s_cbranch", "s_branch", "s_waitcnt", "s_barrier", "s_endpgm", "s_setprio", "s_sleep", "s_bitcmp")):
                self.r = set().union(*R) if R else set()
            elif op.startswith(("s_load", "s_buffer_load", "s_memtime", "s_memrealtime")):
                self.cls = "smem"; self.w = set(R[0]); self.r = set().union(*R[1:]) if len(R) > 1 else set()
            else:
                self.w = set(R[0]) if R else set(); self.r = set().union(*R[1:]) if len(R) > 1 else set()
                if "saveexec" in op: self.w |= {"exec"}
            if op in ("s_cbranch_vccz", "s_cbranch_vccnz"): self.r |= {"vcc"}

def check_hazards(lines, verbose=True):
    ins = []; labels = {}
    for l in lines:
        s = l.split(";")[0].strip()
        if not s or s.startswith("."): continue
        if s.endswith(":"):
            labels[s[:-1]] = len(ins); continue
        ins.append(Ins(s, len(ins)))
    def succ(i):
        I = ins[i]
        if I.op == "s_endpgm": return []
        if I.op == "s_branch": return [labels[I.ops[0]]]
        r = [i + 1] if i + 1 < len(ins) else []
        if I.op.startswith("s_cbranch"): r.append(labels[I.ops[0]])
        return r
    probs = []
    def need(P, C):
        n = 0
        vw = {x for x in P.w if x[0] in "va"}
        sw = {x for x in P.w if x[0] == "s" or x == "vcc"}
        if P.cls == "valu":
            if C.cls == "mfma" and (vw & C.r): n = max(n, 2)
            if C.cls == "valu":
                if P.trans and not C.trans and (vw & C.r): n = max(n, 1)
                if sw & C.r: n = max(n, 2)
                if C.base in ("v_readfirstlane_b32", "v_readlane_b32") and (vw & C.r): n = max(n, 1)
                if C.base in ("v_readlane_b32", "v_writelane_b32") and (sw & C.r): n = max(n, 4)
                if C.base.startswith("v_permlane") and (vw & C.r): n = max(n, 2)
                if C.dpp and (vw & C.r): n = max(n, 2)
                if P.base.startswith("v_dot") and (vw & (C.r | C.w)) and not (C.base == P.base): n = max(n, 3)
            if P.base.startswith("v_dot") and C.cls in ("ds", "vmem") and (vw & C.r): n = max(n, 3)
            if C.cls == "vmem" and (sw & C.r): n = max(n, 5)
            if C.cls == "salu" and (sw & C.r): n = max(n, 1)
            if "exec" in P.w: n = max(n, 5)
        if P.cls == "mfma":
            big = 12 if P.passes == 8 else 8
            if C.cls == "mfma":
                if P.w & (C.A | C.B): n = max(n, big)
                if P.w & C.C:
                    if not (P.w == C.C and P.op == C.op): n = max(n, big - 2)
                elif P.w & C.w: n = max(n, big)
            elif C.cls in ("valu", "ds", "vmem"):
                if P.w & (C.r | C.w): n = max(n, big)
            if C.cls == "valu" and (P.C & C.w): n = max(n, 7 if P.passes == 8 else 3)
        if P.cls == "salu" and "m0" in P.w and C.cls == "vmem" and getattr(C, "lds", False): n = max(n, 1)
        if P.cls == "vmem" and getattr(P, "widestore", False):
            if P.sdata & C.w: n = max(n, 2 if C.cls in ("valu", "mfma") else 1)
        return n
    for i, P in enumerate(ins):
        if P.cls not in ("valu", "mfma", "salu", "vmem"): continue
        stack = [(j, 0) for j in succ(i)]
        seen = {}
        while stack:
            j, d = stack.pop()
            if d >= 13: continue
            if seen.get(j, 99) <= d: continue
            seen[j] = d
            C = ins[j]
            n = need(P, C)
            if n > d:
                probs.append((P.text, C.text, n, d))
            for k in succ(j):
                stack.append((k, d + C.ws))
    if verbose:
        for p in probs[:40]:
            print("HAZARD: need %d have %d:\n    %s\n    %s" % (p[2], p[3], p[0], p[1]))
    return probs
```

```python
from asmlib import *
import struct
MB = 1 << 20
WS_QF  = 0
WS_KV  = 2*MB
WS_Z1F = 6*MB
WS_Z2R = 9*MB
WS_Z2F = 12*MB
WS_ACT = 16*MB
ACT_BYTES = 64*75*1024
WS_CNT = 24*MB
WS_BYTES = 32*MB
def f32(x):
    return "0x%08x" % struct.unpack("<I", struct.pack("<f", x))[0]
LOG2E = 1.4426950408889634
QSCALE = 0.25 * LOG2E

def kernel_head(a, name):
    a.e(f".globl {name}")
    a.e(".p2align 8")
    a.e(f".type {name},@function")
    a.label(name)

def kernel_desc(name, vgpr, sgpr, accum=None):
    accum = accum if accum is not None else ((vgpr + 3) // 4) * 4
    return f""".amdhsa_kernel {name}
  .amdhsa_next_free_vgpr {vgpr}
  .amdhsa_next_free_sgpr {sgpr}
  .amdhsa_accum_offset {accum}
  .amdhsa_group_segment_fixed_size 0
  .amdhsa_kernarg_size 88
  .amdhsa_user_sgpr_count 2
  .amdhsa_user_sgpr_kernarg_segment_ptr 1
  .amdhsa_system_sgpr_workgroup_id_x 1
.end_amdhsa_kernel
"""

def srd(a, d, lo, hi, nrec):
    a.e(f"s_mov_b32 s{d}, s{lo}")
    a.e(f"s_and_b32 s{d+1}, s{hi}, 0xffff")
    a.e(f"s_mov_b32 s{d+2}, {nrec}")
    a.e(f"s_mov_b32 s{d+3}, 0x00020000")

def mfma32(a, d, A, B, C):
    a.e(f"v_mfma_f32_32x32x16_bf16 {vr(d,16)}, {vr(A,4)}, {vr(B,4)}, {vr(C,16) if isinstance(C,int) else C}")

def bf16_round(a, v, tmp=None):
    a.e(f"v_cvt_pk_bf16_f32 v{v}, v{v}, v{v}")
    a.e(f"v_and_b32 v{v}, 0xffff0000, v{v}")

def ln_stats(a, s1, s2, n, mu, r, t):
    a.e(f"v_mul_f32 v{mu}, {f32(1.0/n)}, v{s1}")
    a.e(f"v_mul_f32 v{t}, {f32(1.0/n)}, v{s2}")
    a.e(f"v_fma_f32 v{t}, -v{mu}, v{mu}, v{t}")
    a.e(f"v_max_f32 v{t}, 0, v{t}")
    bf16_round(a, t)
    a.e(f"v_add_f32 v{t}, {f32(1e-5)}, v{t}")
    bf16_round(a, t)
    a.e(f"v_sqrt_f32 v{t}, v{t}")
    a.e("s_nop 0")
    bf16_round(a, t)
    a.e(f"v_rcp_f32 v{r}, v{t}")
    bf16_round(a, mu)

import os
STAMP = bool(int(os.environ.get("STAMP", "0")))
WS_DBG = 28*MB
STAMP_S = 64
def stamp(a, i):
    if STAMP:
        a.e(f"s_memtime s[{STAMP_S+2*i}:{STAMP_S+2*i+1}]")
        a.e("s_waitcnt lgkmcnt(0)")
def stamp_rt(a, i):
    if STAMP:
        a.e(f"s_memrealtime s[{STAMP_S+2*i}:{STAMP_S+2*i+1}]")
        a.e("s_waitcnt lgkmcnt(0)")
def stamp_flush(a, n, ws_lo, ws_hi, wave_s, kidx, vt=240, srd_s=96):
    if not STAMP: return
    a.e("s_waitcnt vmcnt(0) lgkmcnt(0)")
    a.e(f"s_memtime s[{STAMP_S+2*n}:{STAMP_S+2*n+1}]")
    a.e(f"s_memrealtime s[{STAMP_S+2*n+2}:{STAMP_S+2*n+3}]")
    a.e(f"s_load_dwordx2 s[{srd_s}:{srd_s+1}], s[0:1], 80")
    a.e("s_waitcnt lgkmcnt(0)")
    a.e(f"s_and_b32 s{srd_s+1}, s{srd_s+1}, 0xffff")
    a.e(f"s_mov_b32 s{srd_s+2}, {WS_BYTES}")
    a.e(f"s_mov_b32 s{srd_s+3}, 0x00020000")
    a.e(f"s_lshl_b32 s{STAMP_S-1}, s2, 4")
    a.e(f"s_add_u32 s{STAMP_S-1}, s{STAMP_S-1}, s{wave_s}")
    a.e(f"s_lshl_b32 s{STAMP_S-1}, s{STAMP_S-1}, 7")
    a.e(f"s_add_u32 s{STAMP_S-1}, s{STAMP_S-1}, {WS_DBG + kidx*(MB//2)}")
    a.e(f"v_mov_b32 v{vt}, 0")
    a.e("s_mov_b64 exec, 1")
    for i in range(n + 2):
        a.e(f"v_mov_b32 v{vt+2}, s{STAMP_S+2*i}")
        a.e(f"v_mov_b32 v{vt+3}, s{STAMP_S+2*i+1}")
        a.e(f"buffer_store_dwordx2 v[{vt+2}:{vt+3}], v{vt}, s[{srd_s}:{srd_s+3}], s{STAMP_S-1} offen offset:{8*i}")
        a.e("s_waitcnt vmcnt(0)")
```

```python
from common import *

STAGE = 40960
def gen_k1(a):
    name = "gemm1_kernel"
    kernel_head(a, name)
    a.e("s_cmp_ge_u32 s2, 256")
    a.e("s_cbranch_scc1 K1_exit")
    a.e("s_load_dwordx4 s[24:27], s[0:1], 0")
    a.e("s_load_dwordx2 s[28:29], s[0:1], 32")
    a.e("s_load_dwordx2 s[30:31], s[0:1], 80")
    a.e("v_lshrrev_b32 v1, 6, v0")
    MAP = int(os.environ.get("MAP", "0"))
    a.e("s_nop 0")
    a.e("v_readfirstlane_b32 s16, v1")
    if MAP == 0:
        a.e("s_and_b32 s17, s2, 7")
        a.e("s_lshr_b32 s18, s2, 4")
        a.e("s_bfe_u32 s19, s2, 0x10003")
    elif MAP == 1:
        a.e("s_bfe_u32 s17, s2, 0x20001")
        a.e("s_lshl_b32 s17, s17, 1")
        a.e("s_bfe_u32 s18, s2, 0x10004")
        a.e("s_or_b32 s17, s17, s18")
        a.e("s_bfe_u32 s19, s2, 0x10003")
        a.e("s_and_b32 s18, s2, 1")
        a.e("s_lshl_b32 s18, s18, 3")
        a.e("s_lshr_b32 s20, s2, 5")
        a.e("s_or_b32 s18, s18, s20")
    elif MAP == 2:
        a.e("s_bfe_u32 s17, s2, 0x30004")
        a.e("s_bfe_u32 s19, s2, 0x10003")
        a.e("s_and_b32 s18, s2, 7")
        a.e("s_lshl_b32 s18, s18, 1")
        a.e("s_lshr_b32 s20, s2, 7")
        a.e("s_or_b32 s18, s18, s20")
    a.e("v_and_b32 v2, 63, v0")
    stamp_rt(a, 0); stamp(a, 1)
    a.e("s_cmp_ge_u32 s16, 4")
    a.e("s_cbranch_scc0 K1_compute")
    a.c("loader waves 4..7")
    a.e("s_sub_u32 s16, s16, 4")
    a.e("s_cmp_eq_u32 s19, 0")
    a.e("s_mov_b32 s20, 2752")
    a.e("s_cmov_b32 s20, 3072")
    a.e("s_mov_b32 s21, 128")
    a.e("s_cmov_b32 s21, 1024")
    a.e("s_lshl_b32 s22, s17, 7")
    a.e("s_lshr_b32 s23, s17, 2")
    a.e("s_mul_i32 s23, s23, 1376")
    a.e("s_and_b32 s32, s17, 3")
    a.e("s_mul_i32 s32, s32, 352")
    a.e("s_add_u32 s23, s23, s32")
    a.e("s_cmp_eq_u32 s19, 0")
    a.e("s_cselect_b32 s22, s22, s23")
    a.e("v_lshrrev_b32 v3, 4, v2")
    a.e("s_and_b32 s33, s16, 1")
    a.e("s_lshl_b32 s33, s33, 2")
    a.e("v_add_u32 v3, s33, v3")
    a.e("v_and_b32 v8, 7, v2")
    a.e("v_xor_b32 v3, v3, v8")
    a.e("v_lshlrev_b32 v3, 4, v3")
    a.e("v_lshrrev_b32 v9, 3, v2")
    a.e("s_lshl_b32 s34, s18, 7")
    a.e("s_lshl_b32 s35, s16, 3")
    a.e("s_add_u32 s34, s34, s35")
    a.e("v_add_u32 v4, s34, v9")
    a.e("v_lshlrev_b32 v4, 10, v4")
    a.e("v_add_u32 v4, v4, v3")
    for u in range(1, 4):
        a.e(f"v_add_u32 v{4+u}, {u*32768}, v4")
    a.e("v_bfe_u32 v3, v2, 4, 1")
    a.e("v_lshlrev_b32 v3, 2, v3")
    a.e("v_xor_b32 v3, v3, v8")
    a.e("v_lshlrev_b32 v3, 4, v3")
    a.e("v_add_u32 v16, s35, v9")
    a.e("v_mul_lo_u32 v16, v16, s20")
    a.e("v_add_u32 v16, v16, v3")
    a.e("v_add_u32 v10, s22, v16")
    a.e("s_lshl_b32 s36, s20, 5")
    a.e("v_add_u32 v11, s36, v10")
    a.e("v_add_u32 v12, s21, v10")
    a.e("v_add_u32 v13, s21, v11")
    a.e("v_add_u32 v14, s21, v12")
    a.e("v_add_u32 v15, s21, v13")
    a.e("s_lshl_b32 s37, s20, 6")
    ROT = int(os.environ.get("ROT", "0"))
    if ROT == 0:
        a.e("s_mov_b32 s47, 0")
    elif ROT == 1:
        a.e("s_and_b32 s47, s18, 7")
    elif ROT == 2:
        a.e("s_add_u32 s47, s18, s17")
        a.e("s_and_b32 s47, s47, 7")
    elif ROT == 3:
        a.e("s_mov_b32 s47, s17")
    a.e("s_lshl_b32 s38, s47, 7")
    a.e("s_mul_i32 s39, s47, s37")
    a.e("s_lshl_b32 s48, s37, 3")
    a.e("s_lshl_b32 s40, s16, 10")
    a.e("s_mov_b32 s41, 0")
    a.e("s_waitcnt lgkmcnt(0)")
    srd(a, 4, 24, 25, 2*MB)
    a.e("s_cmp_eq_u32 s19, 0")
    a.e("s_cselect_b32 s8, s26, s28")
    a.e("s_cselect_b32 s9, s27, s29")
    a.e("s_and_b32 s9, s9, 0xffff")
    a.e("s_cmp_eq_u32 s19, 0")
    a.e(f"s_mov_b32 s10, {512*2752}")
    a.e(f"s_cmov_b32 s10, {512*3072}")
    a.e("s_mov_b32 s11, 0x00020000")
    a.e("v_and_b32 v17, 31, v2")
    a.e("v_lshrrev_b32 v18, 5, v2")
    a.e("v_bfe_u32 v19, v17, 1, 3")
    a.e("v_xor_b32 v19, v19, v18")
    a.e("v_lshlrev_b32 v19, 4, v19")
    a.e("s_lshl_b32 s43, s16, 5")
    a.e("v_add_u32 v17, s43, v17")
    a.e("v_lshl_add_u32 v20, v17, 7, v19")
    for q in range(1, 4):
        a.e(f"v_xor_b32 v{20+q}, {q<<5}, v20")
    for r in range(24, 28):
        a.e(f"v_mov_b32 v{r}, 0")
    a.e("s_mov_b32 s44, 0xffff0000")
    a.e("s_mov_b32 s45, 0")
    def dma_list():
        L = []
        for u in range(4):
            L.append((u*4096, f"buffer_load_dwordx4 v{4+u}, s[4:7], s38 offen lds"))
            if u < 3:
                L.append((16384 + (2*u)*4096, f"buffer_load_dwordx4 v{10+2*u}, s[8:11], s39 offen lds"))
                L.append((16384 + (2*u+1)*4096, f"buffer_load_dwordx4 v{10+2*u+1}, s[8:11], s39 offen lds"))
        return L
    def adv_issue():
        a.e("s_add_u32 s38, s38, 128")
        a.e("s_and_b32 s38, s38, 1023")
        a.e("s_add_u32 s39, s39, s37")
        a.e("s_cmp_ge_u32 s39, s48")
        a.e("s_cmov_b32 s39, 0")
        a.e(f"s_add_u32 s40, s40, {STAGE}")
        a.e(f"s_cmp_ge_u32 s40, {4*STAGE}")
        a.e(f"s_cselect_b32 s42, {4*STAGE}, 0")
        a.e("s_sub_u32 s40, s40, s42")
    def stats_head():
        for q in range(4):
            a.e(f"ds_read_b128 {vr(32+4*q,4)}, v{20+q}")
        a.e(f"s_add_u32 s45, s45, {STAGE}")
        a.e(f"s_cmp_ge_u32 s45, {4*STAGE}")
        a.e(f"s_mov_b32 s46, {STAGE}")
        a.e(f"s_cmov_b32 s46, {(-3*STAGE) & 0xffffffff}")
        a.e("s_cmov_b32 s45, 0")
        for q in range(4):
            a.e(f"v_add_u32 v{20+q}, s46, v{20+q}")
    def stats_ops():
        L = []
        for q in range(4):
            L.append(f"s_waitcnt lgkmcnt({3-q})")
            for i in range(4):
                r = 32+4*q+i
                L += [f"v_lshlrev_b32 v{48+2*(i&1)}, 16, v{r}", f"v_and_b32 v{49+2*(i&1)}, s44, v{r}",
                      f"v_add_f32 v24, v24, v{48+2*(i&1)}", f"v_add_f32 v25, v25, v{49+2*(i&1)}",
                      f"v_fmac_f32 v26, v{48+2*(i&1)}, v{48+2*(i&1)}", f"v_fmac_f32 v27, v{49+2*(i&1)}, v{49+2*(i&1)}"]
        if os.environ.get("LNOST"): L = ["s_waitcnt lgkmcnt(0)"]
        return L
    a.label("K1_pro")
    for off, ins in dma_list():
        a.e(f"s_add_u32 m0, s40, {off}")
        a.e("s_nop 0")
        a.e(ins)
    adv_issue()
    a.e("s_add_u32 s41, s41, 1")
    a.e("s_cmp_eq_u32 s41, 2")
    a.e("s_cbranch_scc0 K1_pro1")
    a.e("s_waitcnt vmcnt(10)")
    a.e("s_barrier")
    a.label("K1_pro1")
    a.e("s_cmp_lt_u32 s41, 3")
    a.e("s_cbranch_scc1 K1_pro")
    a.label("K1_steady")
    stats_head()
    so = stats_ops(); dl = dma_list()
    for k, (off, ins) in enumerate(dl):
        a.e(f"s_add_u32 m0, s40, {off}")
        a.e("s_nop 0")
        a.e(ins)
        for l in so[len(so)*k//10: len(so)*(k+1)//10]: a.e(l)
    adv_issue()
    a.e("s_add_u32 s41, s41, 1")
    a.e("s_waitcnt vmcnt(20)")
    a.e("s_barrier")
    a.e("s_cmp_lt_u32 s41, 8")
    a.e("s_cbranch_scc1 K1_steady")
    a.label("K1_tail")
    stats_head()
    for l in stats_ops(): a.e(l)
    a.e("s_add_u32 s41, s41, 1")
    a.e("s_cmp_eq_u32 s41, 11")
    a.e("s_cbranch_scc1 K1_ld5")
    a.e("s_cmp_eq_u32 s41, 9")
    a.e("s_cbranch_scc1 K1_ld4")
    a.e("s_waitcnt vmcnt(0)")
    a.label("K1_ld4")
    a.e("s_waitcnt vmcnt(10)")
    a.e("s_barrier")
    a.e("s_branch K1_tail")
    a.label("K1_ld5")
    a.c("finalize row stats: combine halves, mu / r, write (mu, r) at token*8")
    a.e("v_add_f32 v24, v24, v25")
    a.e("v_add_f32 v26, v26, v27")
    a.e("v_mov_b32 v25, v24")
    a.e("v_mov_b32 v27, v26")
    a.e("s_nop 1")
    a.e("v_permlane32_swap_b32 v24, v25")
    a.e("v_permlane32_swap_b32 v26, v27")
    a.e("v_add_f32 v24, v24, v25")
    a.e("v_add_f32 v26, v26, v27")
    ln_stats(a, 24, 26, 512, 28, 29, 30)
    a.e("v_lshlrev_b32 v17, 2, v17")
    a.e("ds_write_b32 v17, v28")
    a.e("ds_write_b32 v17, v29 offset:512")
    a.e("s_waitcnt lgkmcnt(0)")
    a.e("s_barrier")
    a.label("K1_exit")
    a.e("s_endpgm")

    a.label("K1_compute")
    X = [16, 24]; W = [32, 44]; ACC = 64
    AX = 160; AX1 = 164; AWE = 12; AWO = 14; SEL = 56; CS = 244
    a.e("s_lshr_b32 s20, s16, 1")
    a.e("s_and_b32 s21, s16, 1")
    a.e("v_and_b32 v3, 31, v2")
    a.e("v_lshrrev_b32 v4, 5, v2")
    a.e("v_bfe_u32 v5, v3, 1, 3")
    a.e("v_xor_b32 v5, v5, v4")
    a.e("v_lshlrev_b32 v5, 4, v5")
    a.e("s_lshl_b32 s22, s20, 5")
    a.e("v_xor_b32 v5, s22, v5")
    a.e("s_lshl_b32 s22, s16, 5")
    a.e("v_add_u32 v6, s22, v3")
    a.e(f"v_lshl_add_u32 v{AX}, v6, 7, v5")
    for q in range(1, 4):
        a.e(f"v_xor_b32 v{AX+q}, {q<<5}, v{AX}")
    for q in range(4):
        a.e(f"v_xor_b32 v{AX1+q}, 4096, v{AX+q}")
    a.e("v_bfe_u32 v5, v2, 2, 2")
    a.e("v_lshl_add_u32 v6, v4, 3, v5")
    a.e("v_lshlrev_b32 v6, 7, v6")
    a.e("v_bfe_u32 v7, v2, 4, 1")
    a.e("v_lshlrev_b32 v7, 1, v7")
    a.e("v_bfe_u32 v15, v2, 1, 1")
    a.e("v_add_u32 v7, v7, v15")
    a.e("s_lshl_b32 s23, s21, 2")
    a.e("v_add_u32 v7, s23, v7")
    a.e("v_lshrrev_b32 v5, 1, v5")
    a.e("v_lshlrev_b32 v5, 2, v5")
    a.e("v_xor_b32 v7, v7, v5")
    a.e("v_lshl_add_u32 v6, v7, 4, v6")
    a.e("v_and_b32 v15, 1, v2")
    a.e("v_lshl_add_u32 v6, v15, 3, v6")
    a.e("v_add_u32 v6, 16384, v6")
    a.e("s_lshl_b32 s23, s20, 11")
    a.e(f"v_add_u32 v{AWE}, s23, v6")
    a.e(f"v_subrev_u32 v{AWO}, s23, v6")
    a.e("v_lshrrev_b32 v5, 1, v2")
    a.e("v_xor_b32 v5, v5, v2")
    a.e("v_bfe_u32 v5, v5, 3, 1")
    a.e("v_add_u32 v5, -1, v5")
    a.e("v_and_b32 v56, 0x3f803f80, v5")
    for r in range(57, 60):
        a.e(f"v_mov_b32 v{r}, v56")
    for r in range(12):
        a.e(f"v_mov_b32 v{CS+r}, 0")
    for r in range(96):
        a.e(f"v_mov_b32 v{ACC+r}, 0")
    a.e("s_mov_b32 s32, 0")
    a.e("s_mov_b32 s33, 0")
    a.e(f"s_mov_b32 s35, {STAGE}")
    a.e("s_waitcnt lgkmcnt(0)")
    srd(a, 12, 30, 31, WS_BYTES)

    def reads(q, buf):
        r = []
        r.append(f"ds_read_b128 {vr(X[buf],4)}, v{AX+q}")
        aw = AWO if (q & 1) else AWE
        for s in range(3):
            for p in range(2):
                r.append(f"ds_read_b64_tr_b16 {vr(W[buf]+4*s+2*p,2)}, v{aw} offset:{s*8192+q*2048+p*512}")
        r.append(f"ds_read_b128 {vr(X[buf]+4,4)}, v{AX1+q}")
        return r

    a.e("s_barrier")
    stamp(a, 2)
    for l in reads(0, 0): a.e(l)
    a.e("s_cmp_eq_u32 s19, 0")
    a.e("s_cbranch_scc0 K1_loopZ")

    def mainloop(tag, isz):
        a.label(f"K1_loop{tag}")
        for q in range(4):
            buf = q & 1
            a.c(f"step {q}")
            a.e("s_waitcnt lgkmcnt(0)")
            pre = []
            if q == 3:
                a.e("s_barrier")
                a.e(f"s_add_u32 s33, s33, {STAGE}")
                a.e(f"s_cmp_ge_u32 s33, {4*STAGE}")
                a.e(f"s_cselect_b32 s34, {(-3*STAGE) & 0xffffffff}, s35")
                a.e(f"s_cselect_b32 s33, 0, s33")
                addv = [f"v_add_u32 v{r}, s34, v{r}" for r in (AX, AWE, AX1, AX+1, AX+2, AX+3, AX1+1, AX1+2, AX1+3, AWO)]
                rd = reads(0, 0)
            else:
                addv = []
                rd = reads(q + 1, buf ^ 1)
            mf = []
            for aa in range(2):
                for s in range(3):
                    d = ACC + 16*(3*aa + s)
                    if s == 2 and not isz:
                        mf.append((d, X[buf]+4*aa, W[buf]+4*s))
                    else:
                        mf.append((d, W[buf]+4*s, X[buf]+4*aa))
            fill = [addv[:3] + rd[:3], rd[3:6], rd[6:] + addv[3:5], addv[5:8], addv[8:], []]
            for k in range(6):
                if os.environ.get("NOMFMA"): continue
                mfma32(a, mf[k][0], mf[k][1], mf[k][2], mf[k][0])
                for l in fill[k]: a.e(l)
                if q % 2 == 0 and k >= 3 and not os.environ.get("NOST"):
                    sg = k - 3
                    a.e(f"v_mfma_f32_16x16x32_bf16 {vr(CS+4*sg,4)}, {vr(SEL,4)}, {vr(W[buf]+4*sg,4)}, {vr(CS+4*sg,4)}")
        a.e("s_add_u32 s32, s32, 1")
        a.e("s_cmp_lt_u32 s32, 8")
        a.e(f"s_cbranch_scc1 K1_loop{tag}")

    T = 168
    MU = [200, 202]; RR = [204, 206]
    CSL = 208
    CSR = 212
    CSB = 184
    def exchange():
        a.e("s_waitcnt lgkmcnt(0)")
        stamp(a, 3)
        a.e("v_and_b32 v5, 15, v2")
        a.e("v_lshl_add_u32 v5, v4, 4, v5")
        a.e("s_mul_i32 s22, s20, 768")
        a.e("s_lshl_b32 s23, s21, 7")
        a.e("s_add_u32 s22, s22, s23")
        a.e("s_add_u32 s22, s22, 2048")
        a.e("v_lshl_add_u32 v5, v5, 2, s22")
        a.e("s_lshl_b32 s22, s16, 7")
        a.e("v_lshl_add_u32 v6, v3, 2, s22")
        a.e("v_xor_b32 v7, 128, v6")
        for s in range(3):
            a.e(f"ds_write_b32 v5, v{CS+4*s} offset:{s*256}")
        a.e(f"ds_read_b32 v{MU[0]}, v6")
        a.e(f"ds_read_b32 v{RR[0]}, v6 offset:512")
        a.e(f"ds_read_b32 v{MU[1]}, v7")
        a.e(f"ds_read_b32 v{RR[1]}, v7 offset:512")
        a.e("s_add_u32 s23, s23, 2048")
        a.e("v_lshl_add_u32 v10, v4, 4, s23")
        a.e("v_lshl_add_u32 v9, v3, 2, s23")
        a.e("s_waitcnt lgkmcnt(0)")
        a.e("s_barrier")
        stamp(a, 4)
    def load_csr(s, dst):
        for i in range(4):
            a.e(f"ds_read_b128 {vr(dst+4*i,4)}, v10 offset:{s*256+i*32}")
            a.e(f"ds_read_b128 {vr(CSB+4*i,4)}, v10 offset:{768+s*256+i*32}")
    def add_csr(dst):
        for i in range(8):
            a.e(f"v_pk_add_f32 {vr(dst+2*i,2)}, {vr(dst+2*i,2)}, {vr(CSB+2*i,2)}")
    def fold_T(d, sl, csr, rr):
        for i in range(8):
            a.e(f"v_pk_fma_f32 {vr(d+2*i,2)}, {vr(csr+2*i,2)}, {vr(MU[sl],2)}, {vr(d+2*i,2)} op_sel_hi:[1,0,1] neg_lo:[0,1,0] neg_hi:[0,1,0]")
        for i in range(8):
            a.e(f"v_pk_mul_f32 {vr(d+2*i,2)}, {vr(d+2*i,2)}, {vr(rr,2)} op_sel_hi:[1,0]")
    def pack_store(d, half, vaddr, soff, tmp, off=0):
        for i in range(4):
            a.e(f"v_cvt_pk_bf16_f32 v{tmp+i}, v{d+8*half+2*i}, v{d+8*half+2*i+1}")
        a.e(f"buffer_store_dwordx4 {vr(tmp,4)}, v{vaddr}, s[12:15], {soff} offen" + (f" offset:{off}" if off else ""))

    mainloop("Q", False)
    exchange()
    load_csr(0, CSR)
    a.e(f"ds_read_b32 v{CSL}, v9 offset:512")
    a.e(f"ds_read_b32 v{CSL+1}, v9 offset:1280")
    RQ = [228, 230]
    for sl in range(2):
        a.e(f"v_mul_f32 v{RQ[sl]}, {f32(QSCALE)}, v{RR[sl]}")
    a.e("s_lshl_b32 s22, s16, 7")
    a.e("v_lshl_add_u32 v8, v4, 4, s22")
    a.e("v_xor_b32 v19, 128, v8")
    a.e("s_lshl_b32 s22, s18, 2")
    a.e("s_add_u32 s22, s22, s16")
    a.e("s_xor_b32 s23, s22, 1")
    a.e("s_lshl_b32 s34, s17, 2")
    a.e("s_lshl_b32 s35, s21, 1")
    a.e("s_add_u32 s34, s34, s35")
    a.e("s_lshl_b32 s34, s34, 6")
    a.e("s_add_u32 s22, s22, s34")
    a.e("s_add_u32 s23, s23, s34")
    a.e("s_lshl_b32 s36, s22, 10")
    a.e("s_lshl_b32 s37, s23, 10")
    a.e("s_lshl_b32 s38, s22, 11")
    a.e(f"s_add_u32 s38, s38, {WS_KV}")
    a.e("s_lshl_b32 s39, s23, 11")
    a.e(f"s_add_u32 s39, s39, {WS_KV}")
    a.e("v_lshlrev_b32 v11, 4, v2")
    a.e("v_add_u32 v15, 65536, v11")
    a.e("v_add_u32 v16, 131072, v11")
    a.e("v_bfe_u32 v17, v2, 4, 1")
    a.e("v_lshlrev_b32 v17, 17, v17")
    a.e("v_and_b32 v18, 15, v2")
    a.e("v_lshl_add_u32 v18, v4, 4, v18")
    a.e("v_lshl_add_u32 v17, v18, 4, v17")
    a.e("s_waitcnt lgkmcnt(0)")
    add_csr(CSR)
    a.e(f"v_add_f32 v{CSL}, v{CSL}, v{CSL+1}")
    load_csr(1, T)
    P = 232
    for sl in range(2):
        d = ACC + 16*(3*sl + 0)
        fold_T(d, sl, CSR, RQ[sl])
        pack_store(d, 0, 11, f"s{36+sl}", P)
        pack_store(d, 1, 15, f"s{36+sl}", P+4)
    a.e("s_waitcnt lgkmcnt(0)")
    add_csr(T)
    VM = 20; VR = 36
    def load_v(sl):
        for i in range(4):
            a.e(f"ds_read_b128 {vr(VM+4*i,4)}, v{(8,19)[sl]} offset:{i*32}")
            a.e(f"ds_read_b128 {vr(VR+4*i,4)}, v{(8,19)[sl]} offset:{512+i*32}")
    load_v(0)
    for sl in range(2):
        d = ACC + 16*(3*sl + 1)
        fold_T(d, sl, T, RR[sl])
        pack_store(d, 0, 11, f"s{38+sl}", P+8)
        pack_store(d, 1, 16, f"s{38+sl}", P)
    for sl in range(2):
        d = ACC + 16*(3*sl + 2)
        a.e("s_waitcnt lgkmcnt(0)")
        for i in range(8):
            a.e(f"v_pk_fma_f32 {vr(d+2*i,2)}, {vr(VM+2*i,2)}, {vr(CSL,2)}, {vr(d+2*i,2)} op_sel_hi:[1,0,1] neg_lo:[0,1,0] neg_hi:[0,1,0]")
        for i in range(8):
            a.e(f"v_pk_mul_f32 {vr(d+2*i,2)}, {vr(d+2*i,2)}, {vr(VR+2*i,2)}")
        if sl == 0: load_v(1)
        pack_store(d, 0, 17, f"s{38+sl}", P+4, 1024)
        pack_store(d, 1, 17, f"s{38+sl}", P+8, 1536)
    stamp_flush(a, 5, 30, 31, 16, 0); a.e("s_endpgm")

    mainloop("Z", True)
    exchange()
    load_csr(0, CSR)
    C1 = 228; C0 = 230; ONE = 232
    k0 = -2.0 * LOG2E * 0.7978845608028654
    a.e(f"v_mov_b32 v{C0}, {f32(k0)}")
    a.e(f"v_mov_b32 v{C1}, {f32(k0*0.044715)}")
    a.e(f"v_mov_b32 v{ONE}, 1.0")
    a.e("s_lshl_b32 s22, s18, 2")
    a.e("s_add_u32 s22, s22, s16")
    a.e("s_xor_b32 s23, s22, 1")
    a.e("s_mul_i32 s22, s22, 43")
    a.e("s_mul_i32 s23, s23, 43")
    a.e("s_and_b32 s34, s17, 3")
    a.e("s_mul_i32 s35, s34, 11")
    a.e("s_lshl_b32 s36, s21, 1")
    a.e("s_add_u32 s35, s35, s36")
    a.e("s_add_u32 s22, s22, s35")
    a.e("s_add_u32 s23, s23, s35")
    a.e("s_lshl_b32 s22, s22, 10")
    a.e("s_lshl_b32 s23, s23, 10")
    a.e("s_cmp_ge_u32 s17, 4")
    a.e(f"s_mov_b32 s35, {WS_Z1F}")
    a.e(f"s_cmov_b32 s35, {WS_Z2R}")
    a.e("s_add_u32 s36, s22, s35")
    a.e("s_add_u32 s37, s23, s35")
    a.e("v_lshlrev_b32 v11, 4, v2")
    a.e("v_add_u32 v15, 4096, v11")
    a.e("v_add_u32 v16, 8192, v11")
    G = 20
    P = 40
    def gelu_half(d):
        for i in range(4):
            a.e(f"v_pk_mul_f32 {vr(G+2*i,2)}, {vr(d+2*i,2)}, {vr(d+2*i,2)}")
        for i in range(4):
            a.e(f"v_pk_fma_f32 {vr(G+2*i,2)}, {vr(G+2*i,2)}, {vr(C1,2)}, {vr(C0,2)} op_sel_hi:[1,0,0]")
        for i in range(4):
            a.e(f"v_pk_mul_f32 {vr(G+2*i,2)}, {vr(G+2*i,2)}, {vr(d+2*i,2)}")
        for i in range(8):
            a.e(f"v_exp_f32 v{G+i}, v{G+i}")
        for i in range(4):
            a.e(f"v_pk_add_f32 {vr(G+2*i,2)}, {vr(G+2*i,2)}, {vr(ONE,2)} op_sel_hi:[1,0]")
        for i in range(8):
            a.e(f"v_rcp_f32 v{G+i}, v{G+i}")
        for i in range(4):
            a.e(f"v_pk_mul_f32 {vr(d+2*i,2)}, {vr(d+2*i,2)}, {vr(G+2*i,2)}")
    cnt = 0
    for s in range(3):
        csr = CSR if s % 2 == 0 else T
        a.e("s_waitcnt lgkmcnt(0)")
        add_csr(csr)
        if s < 2: load_csr(s + 1, T if s % 2 == 0 else CSR)
        if s == 2:
            a.e("s_cmp_eq_u32 s21, 0")
            a.e("s_cbranch_scc1 K1_z2full")
            a.e("s_cmp_eq_u32 s34, 3")
            a.e("s_cbranch_scc1 K1_zdone")
            for sl in range(2):
                d = ACC + 16*(3*sl + s)
                for i in range(4):
                    a.e(f"v_pk_fma_f32 {vr(d+2*i,2)}, {vr(csr+2*i,2)}, {vr(MU[sl],2)}, {vr(d+2*i,2)} op_sel_hi:[1,0,1] neg_lo:[0,1,0] neg_hi:[0,1,0]")
                for i in range(4):
                    a.e(f"v_pk_mul_f32 {vr(d+2*i,2)}, {vr(d+2*i,2)}, {vr(RR[sl],2)} op_sel_hi:[1,0]")
                gelu_half(d)
                pack_store(d, 0, 16, f"s{36+sl}", P + 4*sl)
            stamp_flush(a, 5, 30, 31, 16, 0); a.e("s_endpgm")
            a.label("K1_z2full")
        for sl in range(2):
            d = ACC + 16*(3*sl + s)
            fold_T(d, sl, csr, RR[sl])
            for half in range(2):
                gelu_half(d + 8*half)
                pack_store(d, half, (11, 15, 16)[s], f"s{36+sl}", P + 4*(cnt % 4), 1024*half)
                cnt += 1
    a.label("K1_zdone")
    stamp_flush(a, 5, 30, 31, 16, 0); a.e("s_endpgm")
    return name, kernel_desc(name, 256, 102 if STAMP else 56), f"; @launch kernel={name} grid=(256,1,1) block=(512,1,1) lds=163840"
```

```python
from common import *

BIAS = 64.0
RING = 0
FLG = 65536
def attn_role(a, WAVE=16, pfx="AT"):
    Q = 4; CM = 8; S = [24, 40]; P = [56, 64]; O = 72; K = [88, 92]; V = [96, 104]
    AK = 112; AV = 113; VD = 114; FA = 115; FW = 116; THR = 117; FV = 118; T = 119; CNT = 120
    return Q, CM, S, P, O, K, V, AK, AV, VD, FA, FW, THR, FV, T, CNT

def gen_attn(a, standalone=True):
    name = "attn_kernel"
    Q, CM, S, P, O, K, V, AK, AV, VD, FA, FW, THR, FV, T, CNT = attn_role(a)
    kernel_head(a, name)
    a.e("s_cmp_ge_u32 s2, 256")
    a.e("s_cbranch_scc1 AT_exit")
    a.e("s_load_dwordx2 s[30:31], s[0:1], 80")
    a.e("v_lshrrev_b32 v1, 6, v0")
    a.e("v_and_b32 v2, 63, v0")
    a.e("v_readfirstlane_b32 s16, v1")
    AMAP = int(os.environ.get("AMAP", "0"))
    if AMAP == 0:
        a.e("s_and_b32 s17, s2, 7")
        a.e("s_lshl_b32 s17, s17, 2")
        a.e("s_bfe_u32 s18, s2, 0x20003")
        a.e("s_or_b32 s17, s17, s18")
        a.e("s_lshr_b32 s18, s2, 5")
    else:
        a.e("s_lshr_b32 s17, s2, 3")
        a.e("s_and_b32 s18, s2, 7")
    stamp_rt(a, 0); stamp(a, 1)
    a.e(f"v_lshlrev_b32 v{AK}, 4, v2")
    a.e("s_lshl_b32 s19, s16, 11")
    a.e(f"v_add_u32 v{VD}, s19, v{AK}")
    a.e("s_lshl_b32 s20, s17, 17")
    a.e(f"s_add_u32 s20, s20, {WS_KV}")
    a.e("s_lshl_b32 s21, s18, 3")
    a.e("s_add_u32 s21, s21, s16")
    a.e("s_lshl_b32 s22, s17, 6")
    a.e("s_add_u32 s22, s22, s21")
    a.e("s_lshl_b32 s22, s22, 10")
    a.e("s_mov_b32 s23, s19")
    a.e("s_waitcnt lgkmcnt(0)")
    srd(a, 12, 30, 31, WS_BYTES)
    def dma_chunk():
        a.e("s_mov_b32 m0, s23")
        a.e("s_add_u32 s23, s23, 16384")
        a.e(f"buffer_load_dwordx4 v{VD}, s[12:15], s20 offen lds")
        a.e(f"buffer_load_dwordx4 v{VD}, s[12:15], s20 offen offset:1024 lds")
        a.e("s_and_b32 s23, s23, 0xffff")
        a.e("s_add_u32 s20, s20, 16384")
    a.e(f"buffer_load_dwordx4 {vr(Q,4)}, v{AK}, s[12:15], s22 offen")
    a.e("s_mov_b32 s24, s20")
    for c in range(3): dma_chunk()
    a.e(f"v_lshlrev_b32 v{T}, 2, v2")
    a.e(f"v_add_u32 v{T}, {FLG}, v{T}")
    a.e(f"v_mov_b32 v{CNT}, 0")
    a.e(f"ds_write_b32 v{T}, v{CNT}")
    a.e(f"v_and_b32 v{FA}, 15, v2")
    a.e(f"v_lshlrev_b32 v{FA}, 2, v{FA}")
    a.e(f"v_add_u32 v{FA}, {FLG}, v{FA}")
    a.e(f"v_add_u32 v{FW}, 256, v{T}")
    a.e("s_lshl_b32 s25, s16, 2")
    a.e(f"s_add_u32 s25, s25, {FLG}")
    a.e(f"v_writelane_b32 v{FW}, s25, 0")
    a.e(f"v_bfe_u32 v{THR}, v2, 3, 1")
    a.e(f"v_lshlrev_b32 v{THR}, 1, v{THR}")
    a.e(f"v_sub_u32 v{THR}, 2, v{THR}")
    a.e(f"v_and_b32 v{AV}, 15, v2")
    a.e(f"v_lshlrev_b32 v{AV}, 4, v{AV}")
    a.e(f"v_lshrrev_b32 v{T}, 5, v2")
    a.e(f"v_lshl_add_u32 v{AV}, v{T}, 8, v{AV}")
    a.e(f"v_add_u32 v{AV}, 1024, v{AV}")
    a.e("s_mov_b32 s26, 0x0000ffff")
    a.e("s_mov_b32 s27, 0x0000ffff")
    if os.environ.get("ONES2"):
        a.e(f"v_and_b32 v{T}, 27, v2")
        a.e(f"v_cmp_eq_u32 vcc, 16, v{T}")
        a.e(f"v_mov_b32 v{T}, 0x3f803f80")
        a.e("s_nop 0")
        a.e(f"v_cndmask_b32 v{V[0]}, 0, v{T}, vcc")
        for r in range(1, 16): a.e(f"v_mov_b32 v{V[0]+r}, v{V[0]}")
    else:
        for r in range(16): a.e(f"v_mov_b32 v{V[0]+r}, 0x3f803f80")
    for r in range(16): a.e(f"v_mov_b32 v{O+r}, 0")
    for r in range(8): a.e(f"v_mov_b32 v{P[1]+r}, 0")
    a.e("s_waitcnt lgkmcnt(0)")
    a.e("s_barrier")
    a.e("s_waitcnt vmcnt(4)")
    a.e(f"v_mov_b32 v{CNT}, 1")
    a.e(f"ds_write_b32 v{FW}, v{CNT}")
    a.e(f"v_min_u32 v{T}, 1, v{THR}")
    a.label("AT_spin0")
    a.e(f"ds_read_b32 v{FV}, v{FA}")
    a.e("s_waitcnt lgkmcnt(0)")
    a.e(f"v_cmp_gt_u32 vcc, v{T}, v{FV}")
    a.e("s_nop 0")
    a.e("s_cbranch_vccnz AT_spin0")
    stamp(a, 2)
    a.e(f"ds_read_b128 {vr(K[0],4)}, v{AK}")
    a.e(f"ds_read_b128 {vr(K[1],4)}, v{AK} offset:2048")
    a.e("s_waitcnt lgkmcnt(1)")
    mfma32(a, S[0], K[0], Q, "0")
    a.e("s_nop 11")
    def rowmax(src, dst):
        a.e(f"v_max3_f32 v{dst}, v{src}, v{src+1}, v{src+2}")
        for i in range(3, 15, 2):
            a.e(f"v_max3_f32 v{dst}, v{dst}, v{src+i}, v{src+i+1}")
        a.e(f"v_max_f32 v{dst}, v{dst}, v{src+15}")
    def cross_half_max(dst, tmp):
        a.e(f"v_mov_b32 v{tmp}, v{dst}")
        a.e("s_nop 1")
        a.e(f"v_permlane32_swap_b32 v{dst}, v{tmp}")
        a.e(f"v_max_f32 v{dst}, v{dst}, v{tmp}")
    rowmax(S[0], T)
    cross_half_max(T, FV)
    a.e(f"v_sub_f32 v{CM}, {f32(-BIAS)}, v{T}")
    for r in range(1, 16): a.e(f"v_mov_b32 v{CM+r}, v{CM}")
    a.e("s_mov_b32 s28, 0")
    a.e(f"v_mov_b32 v{CNT}, 3")
    mfma32(a, S[0], K[0], Q, CM)
    a.e("s_nop 7")
    a.label("AT_loop")
    for j in range(8):
        b = j & 1
        a.c(f"tile {j}")
        a.e("s_waitcnt lgkmcnt(0)")
        if j == 6:
            a.e(f"v_cmp_gt_u32 vcc, v{THR}, v{FV}")
            a.e(f"v_add_u32 v{AK}, 16384, v{AK}")
            a.e("s_cbranch_vccnz AT_slow")
            a.label("AT_back")
        mfma32(a, S[b^1], K[b^1], Q, CM)
        if j == 6:
            a.e(f"v_and_b32 v{AK}, 0xffff, v{AK}")
        a.e(f"ds_read_b128 {vr(K[b],4)}, v{AK} offset:{((j+2)&7)*2048}")
        a.e("s_mov_b64 exec, s[26:27]")
        a.e(f"ds_read_b128 {vr(V[b],4)}, v{AV} offset:{j*2048}")
        a.e(f"ds_read_b128 {vr(V[b]+4,4)}, v{AV} offset:{j*2048+512}")
        a.e("s_mov_b64 exec, -1")
        if j == 5:
            a.e(f"ds_read_b32 v{FV}, v{FA}")
        if j == 7:
            a.e(f"v_add_u32 v{T}, -3, v{CNT}")
            a.e(f"ds_write_b32 v{FW}, v{T} offset:32")
            a.e(f"v_add_u32 v{AV}, 16384, v{AV}")
            a.e(f"v_and_b32 v{AV}, 0xffff, v{AV}")
        if j == 3:
            a.e("s_waitcnt vmcnt(0)")
            a.e(f"ds_write_b32 v{FW}, v{CNT}")
            a.e(f"v_add_u32 v{CNT}, 1, v{CNT}")
        if j == 6:
            a.e(f"v_add_u32 v{THR}, 1, v{THR}")
            a.e("s_cmp_ge_u32 s28, 5")
            a.e("s_cbranch_scc1 AT_nodma")
            dma_chunk()
            a.label("AT_nodma")
        s = S[b]; p = P[b]
        for i in range(16):
            a.e(f"v_exp_f32 v{s+i}, v{s+i}")
            if i % 2 == 1 and i >= 3:
                k = (i - 3) // 2
                a.e(f"v_cvt_pk_bf16_f32 v{p+k}, v{s+2*k}, v{s+2*k+1}")
            if i == 5:
                mfma32(a, O, V[b^1], P[b^1], O)
            if i == 11:
                mfma32(a, O, V[b^1]+4, P[b^1]+4, O)
        if j == 7:
            a.e("s_add_u32 s28, s28, 1")
            a.e("s_cmp_lt_u32 s28, 8")
        else:
            a.e("s_nop 0")
        a.e(f"v_cvt_pk_bf16_f32 v{p+7}, v{s+14}, v{s+15}")
    a.e("s_cbranch_scc1 AT_loop")
    a.e("s_waitcnt lgkmcnt(0)")
    stamp(a, 3)
    mfma32(a, O, V[1], P[1], O)
    mfma32(a, O, V[1]+4, P[1]+4, O)
    a.e("s_mul_i32 s29, s21, 75")
    a.e("s_add_u32 s29, s29, s17")
    a.e("s_lshl_b32 s29, s29, 10")
    a.e(f"s_add_u32 s29, s29, {WS_ACT}")
    a.e(f"v_lshlrev_b32 v{AK}, 4, v2")
    a.e("s_nop 7")
    a.c("safety check of the stand-in max: overflow / NaN / vanishing magnitudes -> redo with the true max")
    a.e(f"v_add_f32 v{T}, abs(v{O}), abs(v{O+8})")
    for i in range(1, 8):
        a.e(f"v_add_f32 v{T}, abs(v{O+i}), v{T}")
    a.e(f"v_min3_f32 v{FV}, abs(v{O}), abs(v{O+1}), abs(v{O+2})")
    for i in range(3, 7, 2):
        a.e(f"v_min3_f32 v{FV}, v{FV}, abs(v{O+i}), abs(v{O+i+1})")
    a.e(f"v_min_f32 v{FV}, v{FV}, abs(v{O+7})")
    a.e("s_mov_b32 s32, 0x7f800000")
    a.e(f"v_cmp_ngt_f32 vcc, s32, v{T}")
    a.e(f"s_mov_b32 s33, {f32(2.0**-100)}")
    a.e(f"v_cmp_gt_f32 s[34:35], s33, v{FV}")
    a.e("s_nop 1")
    a.e("s_or_b64 vcc, vcc, s[34:35]")
    if os.environ.get("FORCE_SLOW"):
        a.e("s_branch AT_redo")
    a.e("s_cbranch_vccnz AT_redo")
    a.label("AT_fin")
    a.e(f"v_rcp_f32 v{T}, v{O+8}")
    a.e("s_nop 0")
    for i in range(8):
        a.e(f"v_mul_f32 v{O+i}, v{O+i}, v{T}")
    for i in range(4):
        a.e(f"v_cvt_pk_bf16_f32 v{P[0]+i}, v{O+2*i}, v{O+2*i+1}")
    a.e(f"buffer_store_dwordx4 {vr(P[0],4)}, v{AK}, s[12:15], s29 offen")
    stamp_flush(a, 4, 30, 31, 16, 1, vt=122)
    a.label("AT_exit")
    a.e("s_endpgm")
    a.label("AT_slow")
    a.e("s_sleep 2")
    a.e(f"ds_read_b32 v{FV}, v{FA}")
    a.e("s_waitcnt lgkmcnt(0)")
    a.e(f"v_cmp_gt_u32 vcc, v{THR}, v{FV}")
    a.e("s_nop 0")
    a.e("s_cbranch_vccnz AT_slow")
    a.e("s_branch AT_back")
    a.label("AT_redo")
    a.e(f"v_mov_b32 v{T}, 0xff800000")
    a.e("s_mov_b32 s20, s24")
    a.e("s_mov_b32 s28, 0")
    a.label("AT_r1")
    a.e(f"buffer_load_dwordx4 {vr(K[0],4)}, v{AK}, s[12:15], s20 offen")
    a.e("s_waitcnt vmcnt(0)")
    mfma32(a, S[0], K[0], Q, "0")
    a.e("s_add_u32 s20, s20, 2048")
    a.e("s_add_u32 s28, s28, 1")
    a.e("s_nop 11")
    for i in range(0, 16, 2):
        a.e(f"v_max3_f32 v{T}, v{T}, v{S[0]+i}, v{S[0]+i+1}")
    a.e("s_cmp_lt_u32 s28, 64")
    a.e("s_cbranch_scc1 AT_r1")
    cross_half_max(T, FV)
    a.e(f"v_sub_f32 v{CM}, 0, v{T}")
    for r in range(1, 16): a.e(f"v_mov_b32 v{CM+r}, v{CM}")
    for r in range(16): a.e(f"v_mov_b32 v{O+r}, 0")
    a.e(f"v_and_b32 v{AV}, 2047, v{AV}")
    a.e("s_mov_b32 s20, s24")
    a.e("s_mov_b32 s28, 0")
    a.label("AT_r2")
    a.e(f"buffer_load_dwordx4 {vr(K[0],4)}, v{AK}, s[12:15], s20 offen")
    a.e("s_mov_b64 exec, s[26:27]")
    a.e(f"buffer_load_dwordx4 {vr(V[0],4)}, v{AV}, s[12:15], s20 offen")
    a.e(f"buffer_load_dwordx4 {vr(V[0]+4,4)}, v{AV}, s[12:15], s20 offen offset:512")
    a.e("s_mov_b64 exec, -1")
    a.e("s_waitcnt vmcnt(0)")
    mfma32(a, S[0], K[0], Q, CM)
    a.e("s_add_u32 s20, s20, 2048")
    a.e("s_add_u32 s28, s28, 1")
    a.e("s_nop 11")
    for i in range(16): a.e(f"v_exp_f32 v{S[0]+i}, v{S[0]+i}")
    a.e("s_nop 0")
    for k in range(8): a.e(f"v_cvt_pk_bf16_f32 v{P[0]+k}, v{S[0]+2*k}, v{S[0]+2*k+1}")
    a.e("s_nop 1")
    mfma32(a, O, V[0], P[0], O)
    mfma32(a, O, V[0]+4, P[0]+4, O)
    a.e("s_cmp_lt_u32 s28, 64")
    a.e("s_cbranch_scc1 AT_r2")
    a.e("s_nop 11")
    a.e("s_branch AT_fin")
    return name, kernel_desc(name, 128, 102 if STAMP else 40), f"; @launch kernel={name} grid=(256,1,1) block=(512,1,1) lds={65536+1024}"
```

```python
from common import *

def gen_norm(a):
    name = "norm_kernel"
    kernel_head(a, name)
    a.e("s_cmp_ge_u32 s2, 256")
    a.e("s_cbranch_scc1 NM_exit")
    a.e("s_load_dwordx2 s[30:31], s[0:1], 80")
    a.e("v_lshrrev_b32 v1, 6, v0")
    a.e("v_and_b32 v2, 63, v0")
    a.e("v_readfirstlane_b32 s16, v1")
    norm_body(a, tid=0, lane=2, wave_s=16, lds=0, barrier=True, pfx="NM")
    a.label("NM_exit")
    a.e("s_endpgm")
    return name, kernel_desc(name, 64, 40), f"; @launch kernel={name} grid=(256,1,1) block=(256,1,1) lds=16384"

RSZ = 1552
def norm_body(a, tid, lane, wave_s, lds, barrier, pfx):
    a.e("s_lshr_b32 s17, s2, 2")
    a.e("s_mul_i32 s17, s17, 43*1024")
    a.e(f"s_add_u32 s17, s17, {WS_Z2R}")
    a.e("s_and_b32 s18, s2, 3")
    a.e("s_lshl_b32 s18, s18, 7")
    a.e("s_add_u32 s17, s17, s18")
    a.e(f"v_and_b32 v4, 7, v{tid}")
    a.e(f"v_bfe_u32 v5, v{tid}, 3, 1")
    a.e(f"v_lshrrev_b32 v6, 4, v{tid}")
    a.e("v_lshlrev_b32 v7, 10, v6")
    a.e("v_lshl_add_u32 v7, v5, 9, v7")
    a.e("v_lshl_add_u32 v7, v4, 4, v7")
    a.e("v_add_u32 v8, 16384, v7")
    a.e("v_add_u32 v9, 32768, v7")
    a.e("v_cmp_gt_u32 vcc, 11, v6")
    a.e("v_mov_b32 v10, 0x7fffffff")
    a.e("s_waitcnt lgkmcnt(0)")
    srd(a, 12, 30, 31, WS_BYTES)
    a.e("v_cndmask_b32 v9, v10, v9, vcc")
    for r in range(3):
        a.e(f"buffer_load_dwordx4 {vr(12+4*r,4)}, v{7+r}, s[12:15], s17 offen")
    a.e(f"v_mul_u32_u24 v10, {RSZ}, v4")
    a.e("v_lshl_add_u32 v10, v6, 5, v10")
    a.e("v_lshl_add_u32 v10, v5, 3, v10")
    a.e(f"v_add_u32 v10, {lds+1024}, v10")
    a.e("s_mov_b32 s19, 0xffff0000")
    a.e("v_mov_b32 v48, 0")
    a.e("v_mov_b32 v49, 0")
    for r in range(3):
        a.e(f"s_waitcnt vmcnt({2-r})")
        for i in range(4):
            a.e(f"v_lshlrev_b32 v{24+8*r+2*i}, 16, v{12+4*r+i}")
            a.e(f"v_and_b32 v{25+8*r+2*i}, s19, v{12+4*r+i}")
        for i in range(8):
            a.e(f"v_add_f32 v48, v48, v{24+8*r+i}")
            a.e(f"v_fmac_f32 v49, v{24+8*r+i}, v{24+8*r+i}")
    a.e("s_nop 1")
    a.e("v_add_f32_dpp v48, v48, v48 row_ror:8 row_mask:0xf bank_mask:0xf")
    a.e("v_add_f32_dpp v49, v49, v49 row_ror:8 row_mask:0xf bank_mask:0xf")
    for sw in ("v_permlane16_swap_b32", "v_permlane32_swap_b32"):
        a.e("v_mov_b32 v50, v48")
        a.e("v_mov_b32 v51, v49")
        a.e("s_nop 1")
        a.e(f"{sw} v48, v50")
        a.e(f"{sw} v49, v51")
        a.e("v_add_f32 v48, v48, v50")
        a.e("v_add_f32 v49, v49, v51")
    a.e(f"s_lshl_b32 s20, s{wave_s}, 6")
    a.e(f"s_add_u32 s20, s20, {lds}")
    a.e("v_lshl_add_u32 v11, v4, 3, s20")
    a.e("ds_write_b64 v11, v[48:49]")
    a.e(f"v_lshlrev_b32 v11, 3, v4")
    a.e("s_waitcnt lgkmcnt(0)")
    a.e("s_barrier")
    for w in range(4):
        a.e(f"ds_read_b64 {vr(12+2*w,2)}, v11 offset:{lds+w*64}")
    a.e("s_waitcnt lgkmcnt(0)")
    a.e("v_add_f32 v12, v12, v14"); a.e("v_add_f32 v13, v13, v15")
    a.e("v_add_f32 v16, v16, v18"); a.e("v_add_f32 v17, v17, v19")
    a.e("v_add_f32 v12, v12, v16"); a.e("v_add_f32 v13, v13, v17")
    ln_stats(a, 12, 13, 688, 14, 15, 16)
    a.e("v_mul_f32 v14, v14, v15")
    for r in range(3):
        for i in range(8):
            a.e(f"v_fma_f32 v{24+8*r+i}, v{24+8*r+i}, v15, -v14")
        for i in range(4):
            a.e(f"v_cvt_pk_bf16_f32 v{16+i}, v{24+8*r+2*i}, v{25+8*r+2*i}")
        a.e(f"ds_write_b64 v10, v[16:17] offset:{r*512}")
        a.e(f"ds_write_b64 v10, v[18:19] offset:{r*512+16}")
    a.e(f"v_bfe_u32 v4, v{lane}, 2, 2")
    a.e(f"v_mul_u32_u24 v4, {RSZ}, v4")
    a.e(f"v_lshrrev_b32 v5, 4, v{lane}")
    a.e("v_lshl_add_u32 v4, v5, 5, v4")
    a.e(f"v_and_b32 v5, 3, v{lane}")
    a.e("v_lshl_add_u32 v4, v5, 3, v4")
    a.e(f"s_mul_i32 s20, s{wave_s}, 384")
    a.e(f"s_add_u32 s20, s20, {lds+1024}")
    a.e("v_add_u32 v4, s20, v4")
    a.e(f"v_lshrrev_b32 v5, 5, v{lane}")
    a.e(f"v_and_b32 v6, 31, v{lane}")
    a.e("v_lshlrev_b32 v6, 4, v6")
    a.e("v_lshl_add_u32 v7, v5, 10, v6")
    a.e(f"v_mul_u32_u24 v8, {393216-2048}, v5")
    a.e("v_add_u32 v8, v8, v6")
    a.e(f"v_add_u32 v9, {393216+1024}, v7")
    a.e("s_lshr_b32 s21, s2, 1")
    a.e("s_mul_i32 s21, s21, 3072")
    a.e("s_and_b32 s22, s2, 1")
    a.e("s_lshl_b32 s22, s22, 9")
    a.e("s_add_u32 s21, s21, s22")
    a.e(f"s_mul_i32 s22, s{wave_s}, {2*393216}")
    a.e("s_add_u32 s21, s21, s22")
    a.e(f"s_add_u32 s21, s21, {WS_Z2F}")
    a.e("s_waitcnt lgkmcnt(0)")
    a.e("s_barrier")
    for r in range(3):
        for p in range(2):
            a.e(f"ds_read_b64_tr_b16 {vr(12+4*r+2*p,2)}, v4 offset:{r*128+p*4*RSZ}")
    for r in range(3):
        a.e(f"s_waitcnt lgkmcnt({4-2*r})")
        a.e(f"buffer_store_dwordx4 {vr(12+4*r,4)}, v{7+r}, s[12:15], s21 offen" + (" offset:2048" if r == 1 else ""))

def gen_gemm2(a):
    name = "gemm2_kernel"
    kernel_head(a, name)
    a.e("s_cmp_ge_u32 s2, 256")
    a.e("s_cbranch_scc1 G2_exit")
    a.e("s_load_dwordx4 s[24:27], s[0:1], 40")
    a.e("s_load_dwordx2 s[30:31], s[0:1], 80")
    a.e("v_lshrrev_b32 v1, 6, v0")
    a.e("v_and_b32 v2, 63, v0")
    a.e("v_readfirstlane_b32 s16, v1")
    stamp_rt(a, 0); stamp(a, 1)
    gemm2_body(a, wave_s=16, lds=0)
    stamp_flush(a, 4, 30, 31, 16, 2, vt=150)
    a.label("G2_exit")
    a.e("s_endpgm")
    return name, kernel_desc(name, 168, 102 if STAMP else 48), f"; @launch kernel={name} grid=(256,1,1) block=(256,1,1) lds={4*24576}"

def gemm2_body(a, wave_s, lds):
    ACC = 64; ZF = [16, 28, 40]; WF = [4, 52]
    AE = 60; AO = 61; AZ = 62; AB = 160
    a.e("s_and_b32 s17, s2, 7")
    a.e("s_lshl_b32 s17, s17, 2")
    a.e("s_bfe_u32 s18, s2, 0x20003")
    a.e("s_or_b32 s17, s17, s18")
    a.e("s_lshr_b32 s18, s2, 5")
    a.e("v_lshrrev_b32 v3, 4, v2")
    a.e("v_and_b32 v12, 7, v2")
    a.e("v_xor_b32 v3, v3, v12")
    a.e("v_lshlrev_b32 v3, 4, v3")
    a.e("v_lshrrev_b32 v12, 3, v2")
    a.e(f"v_lshl_add_u32 v{AE}, v12, 12, v3")
    a.e(f"v_xor_b32 v{AO}, 64, v{AE}")
    a.e(f"v_add_u32 v{AO}, 32768, v{AO}")
    a.e("s_lshl_b32 s19, s17, 18")
    a.e(f"s_lshl_b32 s20, s{wave_s}, 10")
    a.e("s_add_u32 s19, s19, s20")
    a.e(f"s_mul_i32 s21, s{wave_s}, 24576")
    a.e(f"s_add_u32 s21, s21, {lds}")
    a.e("s_mov_b32 s22, s21")
    a.e("s_mul_i32 s23, s18, 393216")
    a.e(f"s_mul_i32 s28, s{wave_s}, {32*3072}")
    a.e("s_add_u32 s23, s23, s28")
    a.e(f"s_add_u32 s23, s23, {WS_Z2F}")
    a.e(f"v_lshlrev_b32 v{AZ}, 4, v2")
    a.e("v_and_b32 v13, 31, v2")
    a.e("v_lshrrev_b32 v14, 5, v2")
    a.e("v_bfe_u32 v3, v13, 1, 3")
    a.e("v_xor_b32 v3, v3, v14")
    a.e("v_lshlrev_b32 v3, 4, v3")
    a.e(f"v_lshl_add_u32 v{AB}, v13, 7, v3")
    a.e(f"v_add_u32 v{AB}, s21, v{AB}")
    for q in range(1, 4):
        a.e(f"v_xor_b32 v{AB+q}, {q<<5}, v{AB}")
    a.e("s_waitcnt lgkmcnt(0)")
    srd(a, 4, 24, 25, 8*MB)
    srd(a, 12, 30, 31, WS_BYTES)
    def dma_stage():
        for i2 in range(4):
            a.e(f"s_add_u32 m0, s22, {2*i2*1024}")
            a.e(f"s_add_u32 s28, s19, {i2*65536}")
            a.e(f"buffer_load_dwordx4 v{AE}, s[4:7], s28 offen lds")
            a.e(f"s_add_u32 m0, s22, {(2*i2+1)*1024}")
            a.e("s_nop 0")
            a.e(f"buffer_load_dwordx4 v{AO}, s[4:7], s28 offen lds")
        a.e("s_add_u32 s19, s19, 128")
        a.e("s_add_u32 s22, s22, 8192")
        a.e("s_add_u32 s28, s21, 24576")
        a.e("s_cmp_ge_u32 s22, s28")
        a.e("s_cmov_b32 s22, s21")
    def zload(buf):
        for i in range(3):
            a.e(f"buffer_load_dwordx4 {vr(ZF[buf]+4*i,4)}, v{AZ}, s[12:15], s23 offen offset:{i*1024}")
        a.e("s_add_u32 s23, s23, 3072")
    dma_stage(); zload(0); zload(1); dma_stage()
    for r in range(96): a.e(f"v_mov_b32 v{ACC+r}, 0")
    a.e("s_mov_b32 s29, 0")
    a.e("s_mov_b32 s32, 0")
    stamp(a, 2)
    a.label("G2_loop")
    step = 0
    for st in range(3):
        for q in range(4):
            zb = step % 3
            if q == 0:
                a.e("s_waitcnt vmcnt(11)")
                a.e(f"ds_read_b128 {vr(WF[0],4)}, v{AB}")
                a.e(f"ds_read_b128 {vr(WF[0]+4,4)}, v{AB} offset:4096")
                zload((step + 2) % 3)
                wait = None
            else:
                zload((step + 2) % 3)
                a.e(f"s_waitcnt vmcnt({6 + (8 if q == 1 else 0)})")
            wb = q & 1
            if q < 3:
                a.e(f"ds_read_b128 {vr(WF[wb^1],4)}, v{AB+q+1}")
                a.e(f"ds_read_b128 {vr(WF[wb^1]+4,4)}, v{AB+q+1} offset:4096")
                a.e("s_waitcnt lgkmcnt(2)")
            else:
                a.e("s_waitcnt lgkmcnt(0)")
            for aa in range(2):
                for i in range(3):
                    d = ACC + 16*(3*aa + i)
                    mfma32(a, d, ZF[zb]+4*i, WF[wb]+4*aa, d)
            if q == 3:
                dma_stage()
                a.e("s_add_u32 s32, s32, 8192")
                a.e("s_cmp_ge_u32 s32, 24576")
                a.e("s_mov_b32 s33, 8192")
                a.e(f"s_cmov_b32 s33, {(-16384) & 0xffffffff}")
                a.e("s_cmov_b32 s32, 0")
                for k in range(4):
                    a.e(f"v_add_u32 v{AB+k}, s33, v{AB+k}")
                a.e("s_add_u32 s29, s29, 1")
                a.e("s_cmp_ge_u32 s29, 8")
                a.e("s_cbranch_scc1 G2_done")
            step += 1
    a.e("s_branch G2_loop")
    a.label("G2_done")
    a.e("s_waitcnt vmcnt(0)")
    stamp(a, 3)
    a.e("s_load_dwordx2 s[26:27], s[0:1], 48")
    a.e(f"s_lshr_b32 s19, s{wave_s}, 1")
    a.e("s_lshl_b32 s20, s17, 1")
    a.e("s_add_u32 s20, s20, s19")
    a.e(f"s_and_b32 s22, s{wave_s}, 1")
    a.e("s_mul_i32 s22, s22, 3")
    a.e("s_mul_i32 s23, s18, 6")
    a.e("s_add_u32 s22, s22, s23")
    a.e("s_mul_i32 s23, s20, 43")
    a.e("s_add_u32 s23, s23, s22")
    a.e("s_lshl_b32 s23, s23, 10")
    a.e(f"s_add_u32 s23, s23, {WS_Z1F}")
    for r in range(3):
        a.e(f"buffer_load_dwordx4 {vr(16+4*r,4)}, v{AZ}, s[12:15], s23 offen offset:{r*1024}")
    a.e("s_mul_i32 s28, s20, 75")
    a.e("s_add_u32 s28, s28, s22")
    a.e("s_add_u32 s28, s28, 32")
    a.e("s_lshl_b32 s28, s28, 10")
    a.e(f"s_add_u32 s28, s28, {WS_ACT}")
    a.e("s_lshl_b32 s20, s20, 6")
    a.e("v_lshlrev_b32 v3, 1, v13")
    a.e("s_waitcnt lgkmcnt(0)")
    srd(a, 8, 26, 27, 4096)
    a.e(f"buffer_load_ushort v28, v3, s[8:11], s20 offen")
    a.e(f"v_add_u32 v4, s21, v{AZ}")
    a.e("s_nop 4")
    for k in range(24):
        a.e(f"ds_write_b128 v4, {vr(ACC+4*k,4)} offset:{k*1024}")
    a.e(f"s_mul_i32 s19, s{wave_s}, 6144")
    a.e(f"s_add_u32 s19, s19, {lds}")
    a.e(f"v_add_u32 v5, s19, v{AZ}")
    a.e("v_add_u32 v6, 49152, v5")
    a.e("s_waitcnt lgkmcnt(0)")
    a.e("s_barrier")
    for sw in range(4):
        for k in range(6):
            a.e(f"ds_read_b128 {vr(ACC+24*sw+4*k,4)}, v{5+(sw>>1)} offset:{(sw&1)*24576+k*1024}")
    a.e("s_mov_b32 s19, 0xffff0000")
    a.e("s_waitcnt vmcnt(0)")
    a.e("v_lshlrev_b32 v28, 16, v28")
    a.e("s_waitcnt lgkmcnt(0)")
    for k in range(24):
        a.e(f"v_add_f32 v{ACC+k}, v{ACC+k}, v{ACC+24+k}")
        a.e(f"v_add_f32 v{ACC+48+k}, v{ACC+48+k}, v{ACC+72+k}")
    for k in range(24):
        a.e(f"v_add3_f32 v{ACC+k}, v{ACC+k}, v{ACC+48+k}, v28" if False else f"v_add_f32 v{ACC+k}, v{ACC+k}, v{ACC+48+k}")
        a.e(f"v_add_f32 v{ACC+k}, v{ACC+k}, v28")
    for r in range(3):
        for i in range(4):
            a.e(f"v_lshlrev_b32 v4, 16, v{16+4*r+i}")
            a.e(f"v_and_b32 v5, s19, v{16+4*r+i}")
            a.e(f"v_mul_f32 v4, v4, v{ACC+8*r+2*i}")
            a.e(f"v_mul_f32 v5, v5, v{ACC+8*r+2*i+1}")
            a.e(f"v_cvt_pk_bf16_f32 v{32+4*r+i}, v4, v5")
        a.e(f"s_add_u32 s20, s22, {r}")
        a.e("s_cmp_ge_u32 s20, 43")
        a.e("s_cbranch_scc1 G2_skip")
        a.e(f"buffer_store_dwordx4 {vr(32+4*r,4)}, v{AZ}, s[12:15], s28 offen offset:{r*1024}")
    a.label("G2_skip")

def gen_out(a):
    name = "out_kernel"
    kernel_head(a, name)
    a.e("s_cmp_ge_u32 s2, 256")
    a.e("s_cbranch_scc1 O_exit")
    a.e("s_load_dwordx2 s[24:25], s[0:1], 16")
    a.e("s_load_dwordx4 s[36:39], s[0:1], 56")
    a.e("s_load_dwordx2 s[30:31], s[0:1], 80")
    a.e("s_load_dwordx2 s[28:29], s[0:1], 0")
    a.e("v_lshrrev_b32 v1, 6, v0")
    a.e("v_and_b32 v2, 63, v0")
    a.e("v_readfirstlane_b32 s16, v1")
    stamp_rt(a, 0); stamp(a, 1)
    ACC = 176; AF = 24; WF = [8, 16]
    a.e("s_and_b32 s17, s2, 7")
    a.e("s_lshl_b32 s17, s17, 2")
    a.e("s_bfe_u32 s18, s2, 0x20003")
    a.e("s_or_b32 s17, s17, s18")
    a.e("s_lshr_b32 s18, s2, 5")
    a.e("v_bfe_u32 v3, v2, 4, 1")
    a.e("v_lshlrev_b32 v3, 2, v3")
    a.e("v_and_b32 v4, 7, v2")
    a.e("v_xor_b32 v3, v3, v4")
    a.e("v_lshlrev_b32 v3, 4, v3")
    a.e("v_lshrrev_b32 v4, 3, v2")
    a.e("v_lshl_add_u32 v3, v4, 10, v3")
    a.e("s_lshl_b32 s19, s18, 7")
    a.e("v_add_u32 v3, s19, v3")
    a.e("v_add_u32 v4, 8192-1024, v3")
    a.e("v_lshlrev_b32 v5, 4, v2")
    a.e(f"v_add_u32 v6, {75*1024}, v5")
    a.e("s_lshl_b32 s20, s16, 17")
    a.e(f"s_mul_i32 s21, s16, {11*16384}")
    a.e(f"s_mul_i32 s22, s17, {2*75*1024}")
    a.e("s_lshl_b32 s23, s16, 13")
    a.e("s_add_u32 s23, s23, s22")
    a.e(f"s_mul_i32 s26, s16, {11*1024}")
    a.e("s_add_u32 s26, s26, s22")
    a.e("s_add_u32 s26, s26, 32768")
    a.e(f"s_mul_i32 s27, s16, {19*2048}")
    a.e("s_waitcnt lgkmcnt(0)")
    srd(a, 4, 24, 25, 512*1024)
    srd(a, 8, 36, 37, 688*1024)
    a.e(f"s_add_u32 s12, s30, {WS_ACT}")
    a.e("s_addc_u32 s13, s31, 0")
    a.e("s_and_b32 s13, s13, 0xffff")
    a.e(f"s_mov_b32 s14, {ACT_BYTES}")
    a.e("s_mov_b32 s15, 0x00020000")
    def issue(k):
        o = k < 8
        srdw = "s[4:7]" if o else "s[8:11]"
        sw = 20 if o else 21; sa = 23 if o else 26
        a.e(f"s_add_u32 m0, s27, {k*2048}")
        a.e(f"buffer_load_dwordx4 {vr(AF+8*k,4)}, v5, s[12:15], s{sa} offen")
        a.e(f"buffer_load_dwordx4 v3, {srdw}, s{sw} offen lds")
        a.e(f"buffer_load_dwordx4 v4, {srdw}, s{sw} offen offset:1024 lds")
        a.e(f"buffer_load_dwordx4 {vr(AF+8*k+4,4)}, v6, s[12:15], s{sa} offen")
        a.e(f"s_add_u32 s{sw}, s{sw}, 16384")
        a.e(f"s_add_u32 s{sa}, s{sa}, 1024")
    PRE = 14
    for k in range(PRE): issue(k)
    a.e("v_lshrrev_b32 v7, 5, v2")
    a.e("v_bfe_u32 v240, v2, 2, 2")
    a.e("v_lshl_add_u32 v241, v7, 2, v240")
    a.e("v_lshlrev_b32 v241, 7, v241")
    a.e("v_bfe_u32 v242, v2, 4, 1")
    a.e("v_lshlrev_b32 v242, 1, v242")
    a.e("v_bfe_u32 v243, v2, 1, 1")
    a.e("v_add_u32 v242, v242, v243")
    a.e("v_lshrrev_b32 v240, 1, v240")
    a.e("v_lshlrev_b32 v240, 2, v240")
    a.e("v_xor_b32 v242, v242, v240")
    a.e("v_lshl_add_u32 v241, v242, 4, v241")
    a.e("v_and_b32 v243, 1, v2")
    a.e("v_lshl_add_u32 v241, v243, 3, v241")
    a.e("v_add_u32 v241, s27, v241")
    a.e("v_xor_b32 v242, 64, v241")
    for r in range(64): a.e(f"v_mov_b32 v{ACC+r}, 0")
    stamp(a, 2)
    def wreads(k, buf):
        for b in range(2):
            for p in range(2):
                a.e(f"ds_read_b64_tr_b16 {vr(WF[buf]+4*b+2*p,2)}, v{241+b} offset:{k*2048+p*1024}")
    issued = PRE
    def wait_step(k):
        a.e(f"s_waitcnt vmcnt({4*(issued-1-k)})")
    wait_step(0)
    wreads(0, 0)
    for k in range(19):
        if issued < 19:
            issue(issued); issued += 1
        if k + 1 < 19:
            wait_step(k + 1)
            wreads(k + 1, (k + 1) & 1)
            a.e("s_waitcnt lgkmcnt(4)")
        else:
            a.e("s_waitcnt lgkmcnt(0)")
        for aa in range(2):
            for b in range(2):
                d = ACC + 16*(2*aa + b)
                mfma32(a, d, WF[k & 1]+4*b, AF+8*k+4*aa, d)
    stamp(a, 3)
    a.e("v_and_b32 v240, 31, v2")
    a.e("s_lshl_b32 s20, s17, 6")
    a.e("s_lshr_b32 s21, s16, 1")
    a.e("s_lshl_b32 s21, s21, 5")
    a.e("s_add_u32 s20, s20, s21")
    a.e("s_lshl_b32 s20, s20, 10")
    a.e("s_and_b32 s21, s16, 1")
    a.e("s_lshl_b32 s21, s21, 6")
    a.e("s_add_u32 s20, s20, s21")
    a.e("s_add_u32 s20, s20, s19")
    a.e("v_lshlrev_b32 v240, 10, v240")
    a.e("v_lshl_add_u32 v240, v7, 3, v240")
    srd(a, 4, 28, 29, 2*MB)
    srd(a, 8, 38, 39, 2*MB)
    for i in range(4):
        a.e(f"buffer_load_dwordx2 {vr(8+2*i,2)}, v240, s[4:7], s20 offen offset:{16*i}")
    a.e("v_add_u32 v6, s27, v5")
    for k in range(16):
        a.e(f"ds_write_b128 v6, {vr(ACC+4*k,4)} offset:{k*1024}")
    a.e("s_lshl_b32 s21, s16, 12")
    a.e("v_add_u32 v6, s21, v5")
    a.e(f"v_add_u32 v3, {2*19*2048}, v6")
    a.e("s_waitcnt lgkmcnt(0)")
    a.e("s_barrier")
    for sw in range(4):
        for k in range(4):
            a.e(f"ds_read_b128 {vr(24+16*sw+4*k,4)}, v{(6,3)[sw>>1]} offset:{(sw&1)*19*2048+k*1024}")
    a.e("s_mov_b32 s21, 0xffff0000")
    a.e("s_waitcnt vmcnt(0)")
    for i in range(8):
        a.e(f"v_lshlrev_b32 v{96+2*i}, 16, v{8+i}")
        a.e(f"v_and_b32 v{97+2*i}, s21, v{8+i}")
    a.e("s_waitcnt lgkmcnt(0)")
    for k in range(16):
        a.e(f"v_add_f32 v{24+k}, v{24+k}, v{40+k}")
        a.e(f"v_add_f32 v{56+k}, v{56+k}, v{72+k}")
        a.e(f"v_add_f32 v{24+k}, v{24+k}, v{96+k}")
    for k in range(16):
        a.e(f"v_add_f32 v{24+k}, v{24+k}, v{56+k}")
    for i in range(8):
        a.e(f"v_cvt_pk_bf16_f32 v{112+i}, v{24+2*i}, v{25+2*i}")
    for i in range(4):
        a.e(f"buffer_store_dwordx2 {vr(112+2*i,2)}, v240, s[8:11], s20 offen offset:{16*i}")
    stamp_flush(a, 4, 30, 31, 16, 3, vt=244)
    a.label("O_exit")
    a.e("s_endpgm")
    return name, kernel_desc(name, 256, 102 if STAMP else 48), f"; @launch kernel={name} grid=(256,1,1) block=(256,1,1) lds={4*19*2048}"
```

```python
import sys
from asmlib import *
from common import *
import importlib

HEADER = open('parallel_sum__softmax_full_mha__mixer_gmlp__prompt.s.ref').read().split("; Override launch")[0]

def build(gens, out):
    a = Asm()
    descs = []; launches = []
    for g in gens:
        k = Asm()
        name, desc, launch = g(k)
        pr = check_hazards(k.lines)
        if pr: print(f"{name}: {len(pr)} hazards")
        a.lines += k.lines
        descs.append(desc); launches.append(launch)
    txt = HEADER + "\n".join(launches) + "\n"
    txt += '.amdgcn_target "amdgcn-amd-amdhsa--gfx950"\n.text\n'
    txt += a.text()
    txt += '.section .rodata,"a"\n'
    for d in descs:
        txt += ".p2align 6\n" + d
    open(out, "w").write(txt)
    return txt

if __name__ == "__main__":
    import k1, k2, k3
    gens = [k1.gen_k1, k2.gen_attn, k3.gen_norm, k3.gen_gemm2, k3.gen_out]
    build(gens, sys.argv[1] if len(sys.argv) > 1 else "test_k1.s")
```

```python
from asmlib import *
import struct
MB = 1 << 20
WS_QF  = 0
WS_KV  = 2*MB
WS_Z1F = 6*MB
WS_Z2R = 9*MB
WS_Z2F = 12*MB
WS_ACT = 16*MB
ACT_BYTES = 64*75*1024
WS_CNT = 24*MB
WS_BYTES = 32*MB
def f32(x):
    return "0x%08x" % struct.unpack("<I", struct.pack("<f", x))[0]
LOG2E = 1.4426950408889634
QSCALE = 0.25 * LOG2E

def kernel_head(a, name):
    a.e(f".globl {name}")
    a.e(".p2align 8")
    a.e(f".type {name},@function")
    a.label(name)

def kernel_desc(name, vgpr, sgpr, accum=None):
    accum = accum if accum is not None else ((vgpr + 3) // 4) * 4
    return f""".amdhsa_kernel {name}
  .amdhsa_next_free_vgpr {vgpr}
  .amdhsa_next_free_sgpr {sgpr}
  .amdhsa_accum_offset {accum}
  .amdhsa_group_segment_fixed_size 0
  .amdhsa_kernarg_size 88
  .amdhsa_user_sgpr_count 2
  .amdhsa_user_sgpr_kernarg_segment_ptr 1
  .amdhsa_system_sgpr_workgroup_id_x 1
.end_amdhsa_kernel
"""

def srd(a, d, lo, hi, nrec):
    a.e(f"s_mov_b32 s{d}, s{lo}")
    a.e(f"s_and_b32 s{d+1}, s{hi}, 0xffff")
    a.e(f"s_mov_b32 s{d+2}, {nrec}")
    a.e(f"s_mov_b32 s{d+3}, 0x00020000")

def mfma32(a, d, A, B, C):
    a.e(f"v_mfma_f32_32x32x16_bf16 {vr(d,16)}, {vr(A,4)}, {vr(B,4)}, {vr(C,16) if isinstance(C,int) else C}")

def bf16_round(a, v, tmp=None):
    a.e(f"v_cvt_pk_bf16_f32 v{v}, v{v}, v{v}")
    a.e(f"v_and_b32 v{v}, 0xffff0000, v{v}")

def ln_stats(a, s1, s2, n, mu, r, t):
    a.e(f"v_mul_f32 v{mu}, {f32(1.0/n)}, v{s1}")
    a.e(f"v_mul_f32 v{t}, {f32(1.0/n)}, v{s2}")
    a.e(f"v_fma_f32 v{t}, -v{mu}, v{mu}, v{t}")
    a.e(f"v_max_f32 v{t}, 0, v{t}")
    bf16_round(a, t)
    a.e(f"v_add_f32 v{t}, {f32(1e-5)}, v{t}")
    bf16_round(a, t)
    a.e(f"v_sqrt_f32 v{t}, v{t}")
    a.e("s_nop 0")
    bf16_round(a, t)
    a.e(f"v_rcp_f32 v{r}, v{t}")
    bf16_round(a, mu)

import os
STAMP = bool(int(os.environ.get("STAMP", "0")))
WS_DBG = 28*MB
STAMP_S = 64
def stamp(a, i):
    if STAMP:
        a.e(f"s_memtime s[{STAMP_S+2*i}:{STAMP_S+2*i+1}]")
        a.e("s_waitcnt lgkmcnt(0)")
def stamp_rt(a, i):
    if STAMP:
        a.e(f"s_memrealtime s[{STAMP_S+2*i}:{STAMP_S+2*i+1}]")
        a.e("s_waitcnt lgkmcnt(0)")
def stamp_flush(a, n, ws_lo, ws_hi, wave_s, kidx, vt=240, srd_s=96):
    if not STAMP: return
    a.e("s_waitcnt vmcnt(0) lgkmcnt(0)")
    a.e(f"s_memtime s[{STAMP_S+2*n}:{STAMP_S+2*n+1}]")
    a.e(f"s_memrealtime s[{STAMP_S+2*n+2}:{STAMP_S+2*n+3}]")
    a.e(f"s_load_dwordx2 s[{srd_s}:{srd_s+1}], s[0:1], 80")
    a.e("s_waitcnt lgkmcnt(0)")
    a.e(f"s_and_b32 s{srd_s+1}, s{srd_s+1}, 0xffff")
    a.e(f"s_mov_b32 s{srd_s+2}, {WS_BYTES}")
    a.e(f"s_mov_b32 s{srd_s+3}, 0x00020000")
    a.e(f"s_lshl_b32 s{STAMP_S-1}, s2, 4")
    a.e(f"s_add_u32 s{STAMP_S-1}, s{STAMP_S-1}, s{wave_s}")
    a.e(f"s_lshl_b32 s{STAMP_S-1}, s{STAMP_S-1}, 7")
    a.e(f"s_add_u32 s{STAMP_S-1}, s{STAMP_S-1}, {WS_DBG + kidx*(MB//2)}")
    a.e(f"v_mov_b32 v{vt}, 0")
    a.e("s_mov_b64 exec, 1")
    for i in range(n + 2):
        a.e(f"v_mov_b32 v{vt+2}, s{STAMP_S+2*i}")
        a.e(f"v_mov_b32 v{vt+3}, s{STAMP_S+2*i+1}")
        a.e(f"buffer_store_dwordx2 v[{vt+2}:{vt+3}], v{vt}, s[{srd_s}:{srd_s+3}], s{STAMP_S-1} offen offset:{8*i}")
        a.e("s_waitcnt vmcnt(0)")

DIAG = STAMP and bool(os.environ.get("DIAG"))
def tic(a):
    a.e("s_memtime s[56:57]"); a.e("s_waitcnt lgkmcnt(0)")
def toc(a, acc):
    a.e("s_memtime s[58:59]"); a.e("s_waitcnt lgkmcnt(0)")
    a.e("s_sub_u32 s58, s58, s56"); a.e(f"s_add_u32 s{acc}, s{acc}, s58")
```

```python
from common import *

STAGE = 40960
def gen_k1(a):
    name = "gemm1_kernel"
    kernel_head(a, name)
    a.e("s_cmp_ge_u32 s2, 256")
    a.e("s_cbranch_scc1 K1_exit")
    a.e("s_load_dwordx4 s[24:27], s[0:1], 0")
    a.e("s_load_dwordx2 s[28:29], s[0:1], 32")
    a.e("s_load_dwordx2 s[30:31], s[0:1], 80")
    a.e("v_lshrrev_b32 v1, 6, v0")
    MAP = int(os.environ.get("MAP", "0"))
    a.e("s_nop 0")
    a.e("v_readfirstlane_b32 s16, v1")
    if MAP == 0:
        a.e("s_and_b32 s17, s2, 7")
        a.e("s_lshr_b32 s18, s2, 4")
        a.e("s_bfe_u32 s19, s2, 0x10003")
    elif MAP == 1:
        a.e("s_bfe_u32 s17, s2, 0x20001")
        a.e("s_lshl_b32 s17, s17, 1")
        a.e("s_bfe_u32 s18, s2, 0x10004")
        a.e("s_or_b32 s17, s17, s18")
        a.e("s_bfe_u32 s19, s2, 0x10003")
        a.e("s_and_b32 s18, s2, 1")
        a.e("s_lshl_b32 s18, s18, 3")
        a.e("s_lshr_b32 s20, s2, 5")
        a.e("s_or_b32 s18, s18, s20")
    elif MAP == 2:
        a.e("s_bfe_u32 s17, s2, 0x30004")
        a.e("s_bfe_u32 s19, s2, 0x10003")
        a.e("s_and_b32 s18, s2, 7")
        a.e("s_lshl_b32 s18, s18, 1")
        a.e("s_lshr_b32 s20, s2, 7")
        a.e("s_or_b32 s18, s18, s20")
    a.e("v_and_b32 v2, 63, v0")
    stamp_rt(a, 0); stamp(a, 1)
    a.e("s_cmp_ge_u32 s16, 4")
    a.e("s_cbranch_scc0 K1_compute")
    a.c("loader waves 4..7")
    a.e("s_sub_u32 s16, s16, 4")
    a.e("s_cmp_eq_u32 s19, 0")
    a.e("s_mov_b32 s20, 2752")
    a.e("s_cmov_b32 s20, 3072")
    a.e("s_mov_b32 s21, 128")
    a.e("s_cmov_b32 s21, 1024")
    a.e("s_lshl_b32 s22, s17, 7")
    a.e("s_lshr_b32 s23, s17, 2")
    a.e("s_mul_i32 s23, s23, 1376")
    a.e("s_and_b32 s32, s17, 3")
    a.e("s_mul_i32 s32, s32, 352")
    a.e("s_add_u32 s23, s23, s32")
    a.e("s_cmp_eq_u32 s19, 0")
    a.e("s_cselect_b32 s22, s22, s23")
    a.e("v_lshrrev_b32 v3, 4, v2")
    a.e("s_and_b32 s33, s16, 1")
    a.e("s_lshl_b32 s33, s33, 2")
    a.e("v_add_u32 v3, s33, v3")
    a.e("v_and_b32 v8, 7, v2")
    a.e("v_xor_b32 v3, v3, v8")
    a.e("v_lshlrev_b32 v3, 4, v3")
    a.e("v_lshrrev_b32 v9, 3, v2")
    a.e("s_lshl_b32 s34, s18, 7")
    a.e("s_lshl_b32 s35, s16, 3")
    a.e("s_add_u32 s34, s34, s35")
    a.e("v_add_u32 v4, s34, v9")
    a.e("v_lshlrev_b32 v4, 10, v4")
    a.e("v_add_u32 v4, v4, v3")
    for u in range(1, 4):
        a.e(f"v_add_u32 v{4+u}, {u*32768}, v4")
    a.e("v_bfe_u32 v3, v2, 4, 1")
    a.e("v_lshlrev_b32 v3, 2, v3")
    a.e("v_xor_b32 v3, v3, v8")
    a.e("v_lshlrev_b32 v3, 4, v3")
    a.e("v_add_u32 v16, s35, v9")
    a.e("v_mul_lo_u32 v16, v16, s20")
    a.e("v_add_u32 v16, v16, v3")
    a.e("v_add_u32 v10, s22, v16")
    a.e("s_lshl_b32 s36, s20, 5")
    a.e("v_add_u32 v11, s36, v10")
    a.e("v_add_u32 v12, s21, v10")
    a.e("v_add_u32 v13, s21, v11")
    a.e("v_add_u32 v14, s21, v12")
    a.e("v_add_u32 v15, s21, v13")
    a.e("s_lshl_b32 s37, s20, 6")
    ROT = int(os.environ.get("ROT", "0"))
    if ROT == 0:
        a.e("s_mov_b32 s47, 0")
    elif ROT == 1:
        a.e("s_and_b32 s47, s18, 7")
    elif ROT == 2:
        a.e("s_add_u32 s47, s18, s17")
        a.e("s_and_b32 s47, s47, 7")
    elif ROT == 3:
        a.e("s_mov_b32 s47, s17")
    a.e("s_lshl_b32 s38, s47, 7")
    a.e("s_mul_i32 s39, s47, s37")
    a.e("s_lshl_b32 s48, s37, 3")
    a.e("s_lshl_b32 s40, s16, 10")
    a.e("s_mov_b32 s41, 0")
    a.e("s_waitcnt lgkmcnt(0)")
    srd(a, 4, 24, 25, 2*MB)
    a.e("s_cmp_eq_u32 s19, 0")
    a.e("s_cselect_b32 s8, s26, s28")
    a.e("s_cselect_b32 s9, s27, s29")
    a.e("s_and_b32 s9, s9, 0xffff")
    a.e("s_cmp_eq_u32 s19, 0")
    a.e(f"s_mov_b32 s10, {512*2752}")
    a.e(f"s_cmov_b32 s10, {512*3072}")
    a.e("s_mov_b32 s11, 0x00020000")
    a.e("v_and_b32 v17, 31, v2")
    a.e("v_lshrrev_b32 v18, 5, v2")
    a.e("v_bfe_u32 v19, v17, 1, 3")
    a.e("v_xor_b32 v19, v19, v18")
    a.e("v_lshlrev_b32 v19, 4, v19")
    a.e("s_lshl_b32 s43, s16, 5")
    a.e("v_add_u32 v17, s43, v17")
    a.e("v_lshl_add_u32 v20, v17, 7, v19")
    for q in range(1, 4):
        a.e(f"v_xor_b32 v{20+q}, {q<<5}, v20")
    for r in range(24, 28):
        a.e(f"v_mov_b32 v{r}, 0")
    a.e("s_mov_b32 s44, 0xffff0000")
    a.e("s_mov_b32 s45, 0")
    def dma_list():
        L = []
        for u in range(4):
            L.append((u*4096, f"buffer_load_dwordx4 v{4+u}, s[4:7], s38 offen lds"))
            if u < 3:
                L.append((16384 + (2*u)*4096, f"buffer_load_dwordx4 v{10+2*u}, s[8:11], s39 offen lds"))
                L.append((16384 + (2*u+1)*4096, f"buffer_load_dwordx4 v{10+2*u+1}, s[8:11], s39 offen lds"))
        return L
    def adv_issue():
        a.e("s_add_u32 s38, s38, 128")
        a.e("s_and_b32 s38, s38, 1023")
        a.e("s_add_u32 s39, s39, s37")
        a.e("s_cmp_ge_u32 s39, s48")
        a.e("s_cmov_b32 s39, 0")
        a.e(f"s_add_u32 s40, s40, {STAGE}")
        a.e(f"s_cmp_ge_u32 s40, {4*STAGE}")
        a.e(f"s_cselect_b32 s42, {4*STAGE}, 0")
        a.e("s_sub_u32 s40, s40, s42")
    def stats_head():
        for q in range(4):
            a.e(f"ds_read_b128 {vr(32+4*q,4)}, v{20+q}")
        a.e(f"s_add_u32 s45, s45, {STAGE}")
        a.e(f"s_cmp_ge_u32 s45, {4*STAGE}")
        a.e(f"s_mov_b32 s46, {STAGE}")
        a.e(f"s_cmov_b32 s46, {(-3*STAGE) & 0xffffffff}")
        a.e("s_cmov_b32 s45, 0")
        for q in range(4):
            a.e(f"v_add_u32 v{20+q}, s46, v{20+q}")
    def stats_ops():
        L = []
        for q in range(4):
            L.append(f"s_waitcnt lgkmcnt({3-q})")
            for i in range(4):
                r = 32+4*q+i
                L += [f"v_lshlrev_b32 v{48+2*(i&1)}, 16, v{r}", f"v_and_b32 v{49+2*(i&1)}, s44, v{r}",
                      f"v_add_f32 v24, v24, v{48+2*(i&1)}", f"v_add_f32 v25, v25, v{49+2*(i&1)}",
                      f"v_fmac_f32 v26, v{48+2*(i&1)}, v{48+2*(i&1)}", f"v_fmac_f32 v27, v{49+2*(i&1)}, v{49+2*(i&1)}"]
        if os.environ.get("LNOST"): L = ["s_waitcnt lgkmcnt(0)"]
        return L
    a.label("K1_pro")
    for off, ins in dma_list():
        a.e(f"s_add_u32 m0, s40, {off}")
        a.e("s_nop 0")
        a.e(ins)
    adv_issue()
    a.e("s_add_u32 s41, s41, 1")
    a.e("s_cmp_eq_u32 s41, 2")
    a.e("s_cbranch_scc0 K1_pro1")
    a.e("s_waitcnt vmcnt(10)")
    a.e("s_barrier")
    a.label("K1_pro1")
    a.e("s_cmp_lt_u32 s41, 3")
    a.e("s_cbranch_scc1 K1_pro")
    a.label("K1_steady")
    stats_head()
    so = stats_ops(); dl = dma_list()
    for k, (off, ins) in enumerate(dl):
        a.e(f"s_add_u32 m0, s40, {off}")
        a.e("s_nop 0")
        a.e(ins)
        for l in so[len(so)*k//10: len(so)*(k+1)//10]: a.e(l)
    adv_issue()
    a.e("s_add_u32 s41, s41, 1")
    a.e("s_waitcnt vmcnt(20)")
    a.e("s_barrier")
    a.e("s_cmp_lt_u32 s41, 8")
    a.e("s_cbranch_scc1 K1_steady")
    a.label("K1_tail")
    stats_head()
    for l in stats_ops(): a.e(l)
    a.e("s_add_u32 s41, s41, 1")
    a.e("s_cmp_eq_u32 s41, 11")
    a.e("s_cbranch_scc1 K1_ld5")
    a.e("s_cmp_eq_u32 s41, 9")
    a.e("s_cbranch_scc1 K1_ld4")
    a.e("s_waitcnt vmcnt(0)")
    a.label("K1_ld4")
    a.e("s_waitcnt vmcnt(10)")
    a.e("s_barrier")
    a.e("s_branch K1_tail")
    a.label("K1_ld5")
    a.e("s_load_dwordx2 s[50:51], s[0:1], 40")
    srd(a, 12, 30, 31, WS_BYTES)
    a.e("s_cmp_lg_u32 s16, 0")
    a.e("s_cbranch_scc1 K1_nozero")
    a.e("s_lshl_b32 s46, s2, 2")
    a.e(f"s_add_u32 s46, s46, {WS_CNT}")
    a.e("v_mov_b32 v30, 0")
    a.e("buffer_store_dword v30, v30, s[12:15], s46 offen")
    a.label("K1_nozero")
    if not os.environ.get("NOK1PF"):
        a.e("s_and_b32 s46, s2, 7")
        a.e("s_lshl_b32 s46, s46, 20")
        a.e("s_lshr_b32 s47, s2, 3")
        a.e("s_lshl_b32 s47, s47, 15")
        a.e("s_add_u32 s46, s46, s47")
        a.e("s_lshl_b32 s47, s16, 13")
        a.e("s_add_u32 s46, s46, s47")
        a.e("v_lshlrev_b32 v30, 7, v2")
        a.e("s_waitcnt lgkmcnt(0)")
        srd(a, 4, 50, 51, 8*MB)
        a.e("buffer_load_dword v31, v30, s[4:7], s46 offen")
    a.c("finalize row stats: combine halves, mu / r, write (mu, r) at token*8")
    a.e("v_add_f32 v24, v24, v25")
    a.e("v_add_f32 v26, v26, v27")
    a.e("v_mov_b32 v25, v24")
    a.e("v_mov_b32 v27, v26")
    a.e("s_nop 1")
    a.e("v_permlane32_swap_b32 v24, v25")
    a.e("v_permlane32_swap_b32 v26, v27")
    a.e("v_add_f32 v24, v24, v25")
    a.e("v_add_f32 v26, v26, v27")
    ln_stats(a, 24, 26, 512, 28, 29, 30)
    a.e("v_lshlrev_b32 v17, 2, v17")
    a.e("ds_write_b32 v17, v28")
    a.e("ds_write_b32 v17, v29 offset:512")
    a.e("s_waitcnt lgkmcnt(0)")
    a.e("s_barrier")
    a.label("K1_exit")
    a.e("s_endpgm")

    a.label("K1_compute")
    X = [16, 24]; W = [32, 44]; ACC = 64
    AX = 160; AX1 = 164; AWE = 12; AWO = 14; SEL = 56; CS = 244
    a.e("s_lshr_b32 s20, s16, 1")
    a.e("s_and_b32 s21, s16, 1")
    a.e("v_and_b32 v3, 31, v2")
    a.e("v_lshrrev_b32 v4, 5, v2")
    a.e("v_bfe_u32 v5, v3, 1, 3")
    a.e("v_xor_b32 v5, v5, v4")
    a.e("v_lshlrev_b32 v5, 4, v5")
    a.e("s_lshl_b32 s22, s20, 5")
    a.e("v_xor_b32 v5, s22, v5")
    a.e("s_lshl_b32 s22, s16, 5")
    a.e("v_add_u32 v6, s22, v3")
    a.e(f"v_lshl_add_u32 v{AX}, v6, 7, v5")
    for q in range(1, 4):
        a.e(f"v_xor_b32 v{AX+q}, {q<<5}, v{AX}")
    for q in range(4):
        a.e(f"v_xor_b32 v{AX1+q}, 4096, v{AX+q}")
    a.e("v_bfe_u32 v5, v2, 2, 2")
    a.e("v_lshl_add_u32 v6, v4, 3, v5")
    a.e("v_lshlrev_b32 v6, 7, v6")
    a.e("v_bfe_u32 v7, v2, 4, 1")
    a.e("v_lshlrev_b32 v7, 1, v7")
    a.e("v_bfe_u32 v15, v2, 1, 1")
    a.e("v_add_u32 v7, v7, v15")
    a.e("s_lshl_b32 s23, s21, 2")
    a.e("v_add_u32 v7, s23, v7")
    a.e("v_lshrrev_b32 v5, 1, v5")
    a.e("v_lshlrev_b32 v5, 2, v5")
    a.e("v_xor_b32 v7, v7, v5")
    a.e("v_lshl_add_u32 v6, v7, 4, v6")
    a.e("v_and_b32 v15, 1, v2")
    a.e("v_lshl_add_u32 v6, v15, 3, v6")
    a.e("v_add_u32 v6, 16384, v6")
    a.e("s_lshl_b32 s23, s20, 11")
    a.e(f"v_add_u32 v{AWE}, s23, v6")
    a.e(f"v_subrev_u32 v{AWO}, s23, v6")
    a.e("v_lshrrev_b32 v5, 1, v2")
    a.e("v_xor_b32 v5, v5, v2")
    a.e("v_bfe_u32 v5, v5, 3, 1")
    a.e("v_add_u32 v5, -1, v5")
    a.e("v_and_b32 v56, 0x3f803f80, v5")
    for r in range(57, 60):
        a.e(f"v_mov_b32 v{r}, v56")
    for r in range(12):
        a.e(f"v_mov_b32 v{CS+r}, 0")
    for r in range(96):
        a.e(f"v_mov_b32 v{ACC+r}, 0")
    a.e("s_mov_b32 s32, 0")
    a.e("s_mov_b32 s33, 0")
    a.e(f"s_mov_b32 s35, {STAGE}")
    a.e("s_waitcnt lgkmcnt(0)")
    srd(a, 12, 30, 31, WS_BYTES)

    def reads(q, buf):
        r = []
        r.append(f"ds_read_b128 {vr(X[buf],4)}, v{AX+q}")
        aw = AWO if (q & 1) else AWE
        for s in range(3):
            for p in range(2):
                r.append(f"ds_read_b64_tr_b16 {vr(W[buf]+4*s+2*p,2)}, v{aw} offset:{s*8192+q*2048+p*512}")
        r.append(f"ds_read_b128 {vr(X[buf]+4,4)}, v{AX1+q}")
        return r

    a.e("s_barrier")
    stamp(a, 2)
    for l in reads(0, 0): a.e(l)
    a.e("s_cmp_eq_u32 s19, 0")
    a.e("s_cbranch_scc0 K1_loopZ")

    def mainloop(tag, isz):
        a.label(f"K1_loop{tag}")
        for q in range(4):
            buf = q & 1
            a.c(f"step {q}")
            a.e("s_waitcnt lgkmcnt(0)")
            pre = []
            if q == 3:
                a.e("s_barrier")
                a.e(f"s_add_u32 s33, s33, {STAGE}")
                a.e(f"s_cmp_ge_u32 s33, {4*STAGE}")
                a.e(f"s_cselect_b32 s34, {(-3*STAGE) & 0xffffffff}, s35")
                a.e(f"s_cselect_b32 s33, 0, s33")
                addv = [f"v_add_u32 v{r}, s34, v{r}" for r in (AX, AWE, AX1, AX+1, AX+2, AX+3, AX1+1, AX1+2, AX1+3, AWO)]
                rd = reads(0, 0)
            else:
                addv = []
                rd = reads(q + 1, buf ^ 1)
            mf = []
            for aa in range(2):
                for s in range(3):
                    d = ACC + 16*(3*aa + s)
                    if s == 2 and not isz:
                        mf.append((d, X[buf]+4*aa, W[buf]+4*s))
                    else:
                        mf.append((d, W[buf]+4*s, X[buf]+4*aa))
            fill = [addv[:3] + rd[:3], rd[3:6], rd[6:] + addv[3:5], addv[5:8], addv[8:], []]
            for k in range(6):
                if os.environ.get("NOMFMA"): continue
                mfma32(a, mf[k][0], mf[k][1], mf[k][2], mf[k][0])
                for l in fill[k]: a.e(l)
                if q % 2 == 0 and k >= 3 and not os.environ.get("NOST"):
                    sg = k - 3
                    a.e(f"v_mfma_f32_16x16x32_bf16 {vr(CS+4*sg,4)}, {vr(SEL,4)}, {vr(W[buf]+4*sg,4)}, {vr(CS+4*sg,4)}")
        a.e("s_add_u32 s32, s32, 1")
        a.e("s_cmp_lt_u32 s32, 8")
        a.e(f"s_cbranch_scc1 K1_loop{tag}")

    T = 168
    MU = [200, 202]; RR = [204, 206]
    CSL = 208
    CSR = 212
    CSB = 184
    def exchange():
        a.e("s_waitcnt lgkmcnt(0)")
        stamp(a, 3)
        a.e("v_and_b32 v5, 15, v2")
        a.e("v_lshl_add_u32 v5, v4, 4, v5")
        a.e("s_mul_i32 s22, s20, 768")
        a.e("s_lshl_b32 s23, s21, 7")
        a.e("s_add_u32 s22, s22, s23")
        a.e("s_add_u32 s22, s22, 2048")
        a.e("v_lshl_add_u32 v5, v5, 2, s22")
        a.e("s_lshl_b32 s22, s16, 7")
        a.e("v_lshl_add_u32 v6, v3, 2, s22")
        a.e("v_xor_b32 v7, 128, v6")
        for s in range(3):
            a.e(f"ds_write_b32 v5, v{CS+4*s} offset:{s*256}")
        a.e(f"ds_read_b32 v{MU[0]}, v6")
        a.e(f"ds_read_b32 v{RR[0]}, v6 offset:512")
        a.e(f"ds_read_b32 v{MU[1]}, v7")
        a.e(f"ds_read_b32 v{RR[1]}, v7 offset:512")
        a.e("s_add_u32 s23, s23, 2048")
        a.e("v_lshl_add_u32 v10, v4, 4, s23")
        a.e("v_lshl_add_u32 v9, v3, 2, s23")
        a.e("s_waitcnt lgkmcnt(0)")
        a.e("s_barrier")
        stamp(a, 4)
    def load_csr(s, dst):
        for i in range(4):
            a.e(f"ds_read_b128 {vr(dst+4*i,4)}, v10 offset:{s*256+i*32}")
            a.e(f"ds_read_b128 {vr(CSB+4*i,4)}, v10 offset:{768+s*256+i*32}")
    def add_csr(dst):
        for i in range(8):
            a.e(f"v_pk_add_f32 {vr(dst+2*i,2)}, {vr(dst+2*i,2)}, {vr(CSB+2*i,2)}")
    def fold_T(d, sl, csr, rr):
        for i in range(8):
            a.e(f"v_pk_fma_f32 {vr(d+2*i,2)}, {vr(csr+2*i,2)}, {vr(MU[sl],2)}, {vr(d+2*i,2)} op_sel_hi:[1,0,1] neg_lo:[0,1,0] neg_hi:[0,1,0]")
        for i in range(8):
            a.e(f"v_pk_mul_f32 {vr(d+2*i,2)}, {vr(d+2*i,2)}, {vr(rr,2)} op_sel_hi:[1,0]")
    def pack_store(d, half, vaddr, soff, tmp, off=0):
        for i in range(4):
            a.e(f"v_cvt_pk_bf16_f32 v{tmp+i}, v{d+8*half+2*i}, v{d+8*half+2*i+1}")
        a.e(f"buffer_store_dwordx4 {vr(tmp,4)}, v{vaddr}, s[12:15], {soff} offen" + (f" offset:{off}" if off else ""))

    mainloop("Q", False)
    exchange()
    load_csr(0, CSR)
    a.e(f"ds_read_b32 v{CSL}, v9 offset:512")
    a.e(f"ds_read_b32 v{CSL+1}, v9 offset:1280")
    RQ = [228, 230]
    for sl in range(2):
        a.e(f"v_mul_f32 v{RQ[sl]}, {f32(QSCALE)}, v{RR[sl]}")
    a.e("s_lshl_b32 s22, s16, 7")
    a.e("v_lshl_add_u32 v8, v4, 4, s22")
    a.e("v_xor_b32 v19, 128, v8")
    a.e("s_lshl_b32 s22, s18, 2")
    a.e("s_add_u32 s22, s22, s16")
    a.e("s_xor_b32 s23, s22, 1")
    a.e("s_lshl_b32 s34, s17, 2")
    a.e("s_lshl_b32 s35, s21, 1")
    a.e("s_add_u32 s34, s34, s35")
    a.e("s_lshl_b32 s34, s34, 6")
    a.e("s_add_u32 s22, s22, s34")
    a.e("s_add_u32 s23, s23, s34")
    a.e("s_lshl_b32 s36, s22, 10")
    a.e("s_lshl_b32 s37, s23, 10")
    a.e("s_lshl_b32 s38, s22, 11")
    a.e(f"s_add_u32 s38, s38, {WS_KV}")
    a.e("s_lshl_b32 s39, s23, 11")
    a.e(f"s_add_u32 s39, s39, {WS_KV}")
    a.e("v_lshlrev_b32 v11, 4, v2")
    a.e("v_add_u32 v15, 65536, v11")
    a.e("v_add_u32 v16, 131072, v11")
    a.e("v_bfe_u32 v17, v2, 4, 1")
    a.e("v_lshlrev_b32 v17, 17, v17")
    a.e("v_and_b32 v18, 15, v2")
    a.e("v_lshl_add_u32 v18, v4, 4, v18")
    a.e("v_lshl_add_u32 v17, v18, 4, v17")
    a.e("s_waitcnt lgkmcnt(0)")
    add_csr(CSR)
    a.e(f"v_add_f32 v{CSL}, v{CSL}, v{CSL+1}")
    load_csr(1, T)
    P = 232
    for sl in range(2):
        d = ACC + 16*(3*sl + 0)
        fold_T(d, sl, CSR, RQ[sl])
        pack_store(d, 0, 11, f"s{36+sl}", P)
        pack_store(d, 1, 15, f"s{36+sl}", P+4)
    a.e("s_waitcnt lgkmcnt(0)")
    add_csr(T)
    VM = 20; VR = 36
    def load_v(sl):
        for i in range(4):
            a.e(f"ds_read_b128 {vr(VM+4*i,4)}, v{(8,19)[sl]} offset:{i*32}")
            a.e(f"ds_read_b128 {vr(VR+4*i,4)}, v{(8,19)[sl]} offset:{512+i*32}")
    load_v(0)
    for sl in range(2):
        d = ACC + 16*(3*sl + 1)
        fold_T(d, sl, T, RR[sl])
        pack_store(d, 0, 11, f"s{38+sl}", P+8)
        pack_store(d, 1, 16, f"s{38+sl}", P)
    for sl in range(2):
        d = ACC + 16*(3*sl + 2)
        a.e("s_waitcnt lgkmcnt(0)")
        for i in range(8):
            a.e(f"v_pk_fma_f32 {vr(d+2*i,2)}, {vr(VM+2*i,2)}, {vr(CSL,2)}, {vr(d+2*i,2)} op_sel_hi:[1,0,1] neg_lo:[0,1,0] neg_hi:[0,1,0]")
        for i in range(8):
            a.e(f"v_pk_mul_f32 {vr(d+2*i,2)}, {vr(d+2*i,2)}, {vr(VR+2*i,2)}")
        if sl == 0: load_v(1)
        pack_store(d, 0, 17, f"s{38+sl}", P+4, 1024)
        pack_store(d, 1, 17, f"s{38+sl}", P+8, 1536)
    stamp_flush(a, 5, 30, 31, 16, 0); a.e("s_endpgm")

    mainloop("Z", True)
    exchange()
    load_csr(0, CSR)
    C1 = 228; C0 = 230; ONE = 232
    k0 = -2.0 * LOG2E * 0.7978845608028654
    a.e(f"v_mov_b32 v{C0}, {f32(k0)}")
    a.e(f"v_mov_b32 v{C1}, {f32(k0*0.044715)}")
    a.e(f"v_mov_b32 v{ONE}, 1.0")
    a.e("s_lshl_b32 s22, s18, 2")
    a.e("s_add_u32 s22, s22, s16")
    a.e("s_xor_b32 s23, s22, 1")
    a.e("s_mul_i32 s22, s22, 43")
    a.e("s_mul_i32 s23, s23, 43")
    a.e("s_and_b32 s34, s17, 3")
    a.e("s_mul_i32 s35, s34, 11")
    a.e("s_lshl_b32 s36, s21, 1")
    a.e("s_add_u32 s35, s35, s36")
    a.e("s_add_u32 s22, s22, s35")
    a.e("s_add_u32 s23, s23, s35")
    a.e("s_lshl_b32 s22, s22, 10")
    a.e("s_lshl_b32 s23, s23, 10")
    a.e("s_cmp_ge_u32 s17, 4")
    a.e(f"s_mov_b32 s35, {WS_Z1F}")
    a.e(f"s_cmov_b32 s35, {WS_Z2R}")
    a.e("s_add_u32 s36, s22, s35")
    a.e("s_add_u32 s37, s23, s35")
    a.e("v_lshlrev_b32 v11, 4, v2")
    a.e("v_add_u32 v15, 4096, v11")
    a.e("v_add_u32 v16, 8192, v11")
    G = 20
    P = 40
    def gelu_half(d):
        for i in range(4):
            a.e(f"v_pk_mul_f32 {vr(G+2*i,2)}, {vr(d+2*i,2)}, {vr(d+2*i,2)}")
        for i in range(4):
            a.e(f"v_pk_fma_f32 {vr(G+2*i,2)}, {vr(G+2*i,2)}, {vr(C1,2)}, {vr(C0,2)} op_sel_hi:[1,0,0]")
        for i in range(4):
            a.e(f"v_pk_mul_f32 {vr(G+2*i,2)}, {vr(G+2*i,2)}, {vr(d+2*i,2)}")
        for i in range(8):
            a.e(f"v_exp_f32 v{G+i}, v{G+i}")
        for i in range(4):
            a.e(f"v_pk_add_f32 {vr(G+2*i,2)}, {vr(G+2*i,2)}, {vr(ONE,2)} op_sel_hi:[1,0]")
        for i in range(8):
            a.e(f"v_rcp_f32 v{G+i}, v{G+i}")
        for i in range(4):
            a.e(f"v_pk_mul_f32 {vr(d+2*i,2)}, {vr(d+2*i,2)}, {vr(G+2*i,2)}")
    cnt = 0
    for s in range(3):
        csr = CSR if s % 2 == 0 else T
        a.e("s_waitcnt lgkmcnt(0)")
        add_csr(csr)
        if s < 2: load_csr(s + 1, T if s % 2 == 0 else CSR)
        if s == 2:
            a.e("s_cmp_eq_u32 s21, 0")
            a.e("s_cbranch_scc1 K1_z2full")
            a.e("s_cmp_eq_u32 s34, 3")
            a.e("s_cbranch_scc1 K1_zdone")
            for sl in range(2):
                d = ACC + 16*(3*sl + s)
                for i in range(4):
                    a.e(f"v_pk_fma_f32 {vr(d+2*i,2)}, {vr(csr+2*i,2)}, {vr(MU[sl],2)}, {vr(d+2*i,2)} op_sel_hi:[1,0,1] neg_lo:[0,1,0] neg_hi:[0,1,0]")
                for i in range(4):
                    a.e(f"v_pk_mul_f32 {vr(d+2*i,2)}, {vr(d+2*i,2)}, {vr(RR[sl],2)} op_sel_hi:[1,0]")
                gelu_half(d)
                pack_store(d, 0, 16, f"s{36+sl}", P + 4*sl)
            stamp_flush(a, 5, 30, 31, 16, 0); a.e("s_endpgm")
            a.label("K1_z2full")
        for sl in range(2):
            d = ACC + 16*(3*sl + s)
            fold_T(d, sl, csr, RR[sl])
            for half in range(2):
                gelu_half(d + 8*half)
                pack_store(d, half, (11, 15, 16)[s], f"s{36+sl}", P + 4*(cnt % 4), 1024*half)
                cnt += 1
    a.label("K1_zdone")
    stamp_flush(a, 5, 30, 31, 16, 0); a.e("s_endpgm")
    return name, kernel_desc(name, 256, 102 if STAMP else 56), f"; @launch kernel={name} grid=(256,1,1) block=(512,1,1) lds=163840"
```

```python
from common import *

STAGE = 40960
WS_ST = WS_Z2R
WS_RS = WS_Z2R + MB
RST = 80

def gen_k1(a):
    name = "gemm1_kernel"
    kernel_head(a, name)
    a.e("s_cmp_ge_u32 s2, 256")
    a.e("s_cbranch_scc1 K1_exit")
    a.e("s_load_dwordx4 s[24:27], s[0:1], 0")
    a.e("s_load_dwordx2 s[28:29], s[0:1], 32")
    a.e("s_load_dwordx4 s[48:51], s[0:1], 72")
    a.e("v_lshrrev_b32 v1, 6, v0")
    a.e("v_and_b32 v2, 63, v0")
    a.e("v_readfirstlane_b32 s16, v1")
    MAP = int(os.environ.get("MAP", "1"))
    if MAP == 0:
        a.e("s_and_b32 s17, s2, 15")
        a.e("s_lshr_b32 s18, s2, 4")
    elif MAP == 1:
        a.e("s_bfe_u32 s17, s2, 0x20001")
        a.e("s_bfe_u32 s18, s2, 0x20003")
        a.e("s_lshl_b32 s18, s18, 2")
        a.e("s_or_b32 s17, s17, s18")
        a.e("s_and_b32 s18, s2, 1")
        a.e("s_lshl_b32 s18, s18, 3")
        a.e("s_lshr_b32 s20, s2, 5")
        a.e("s_or_b32 s18, s18, s20")
    elif MAP == 2:
        a.e("s_bfe_u32 s17, s2, 0x40003")
        a.e("s_and_b32 s18, s2, 7")
        a.e("s_lshl_b32 s18, s18, 1")
        a.e("s_lshr_b32 s20, s2, 7")
        a.e("s_or_b32 s18, s18, s20")
    a.e("s_cmp_lt_u32 s17, 11")
    a.e("s_cselect_b32 s19, 1, 0")
    stamp_rt(a, 0); stamp(a, 1)
    a.e("s_cmp_ge_u32 s16, 4")
    a.e("s_cbranch_scc0 K1_compute")
    a.e("s_sub_u32 s16, s16, 4")
    a.e("s_cmp_eq_u32 s19, 1")
    a.e("s_mov_b32 s20, 3072")
    a.e("s_cmov_b32 s20, 2752")
    a.e("s_lshl_b32 s21, s17, 7")
    a.e("s_add_u32 s22, s21, 1376")
    a.e(f"s_add_u32 s23, s21, {2048-11*128}")
    a.e("s_min_u32 s32, s17, 13")
    a.e("s_lshl_b32 s32, s32, 7")
    a.e(f"s_add_u32 s32, s32, {2048-6*128}")
    a.e("s_cmp_eq_u32 s19, 1")
    a.e("s_cselect_b32 s22, s22, s23")
    a.e("s_cselect_b32 s23, s21, s32")
    a.e("v_lshrrev_b32 v3, 4, v2")
    a.e("s_and_b32 s33, s16, 1")
    a.e("s_lshl_b32 s33, s33, 2")
    a.e("v_add_u32 v3, s33, v3")
    a.e("v_and_b32 v8, 7, v2")
    a.e("v_xor_b32 v3, v3, v8")
    a.e("v_lshlrev_b32 v3, 4, v3")
    a.e("v_lshrrev_b32 v9, 3, v2")
    a.e("s_lshl_b32 s34, s18, 7")
    a.e("s_lshl_b32 s35, s16, 3")
    a.e("s_add_u32 s34, s34, s35")
    a.e("v_add_u32 v4, s34, v9")
    a.e("v_lshlrev_b32 v4, 10, v4")
    a.e("v_add_u32 v4, v4, v3")
    for u in range(1, 4):
        a.e(f"v_add_u32 v{4+u}, {u*32768}, v4")
    a.e("v_bfe_u32 v3, v2, 4, 1")
    a.e("v_lshlrev_b32 v3, 2, v3")
    a.e("v_xor_b32 v3, v3, v8")
    a.e("v_lshlrev_b32 v3, 4, v3")
    a.e("v_add_u32 v16, s35, v9")
    a.e("v_mul_u32_u24 v10, 3072, v16")
    a.e("v_add3_u32 v10, v10, v3, s21")
    a.e("v_add_u32 v11, 32*3072, v10")
    a.e("v_mul_lo_u32 v16, v16, s20")
    a.e("v_add_u32 v16, v16, v3")
    a.e("v_add_u32 v12, s22, v16")
    a.e("v_add_u32 v14, s23, v16")
    a.e("s_lshl_b32 s36, s20, 5")
    a.e("v_add_u32 v13, s36, v12")
    a.e("v_add_u32 v15, s36, v14")
    a.e("s_lshl_b32 s37, s20, 6")
    ROT = int(os.environ.get("ROT", "3"))
    if ROT == 0: a.e("s_mov_b32 s47, 0")
    elif ROT == 3:
        a.e("s_lshr_b32 s47, s17, 2")
        a.e("s_lshl_b32 s47, s47, 1")
        a.e("s_add_u32 s47, s47, s18")
        a.e("s_and_b32 s47, s47, 7")
    elif ROT == 4:
        a.e("s_lshr_b32 s47, s17, 3")
        a.e("s_lshl_b32 s47, s47, 2")
        a.e("s_add_u32 s47, s47, s18")
        a.e("s_and_b32 s47, s47, 7")
    else:
        a.e("s_add_u32 s47, s18, s17")
        a.e("s_and_b32 s47, s47, 7")
    a.e("s_lshl_b32 s38, s47, 7")
    a.e(f"s_mul_i32 s39, s47, {64*3072}")
    a.e("s_mul_i32 s43, s47, s37")
    a.e("s_lshl_b32 s40, s16, 10")
    a.e("s_mov_b32 s41, 0")
    a.e("s_waitcnt lgkmcnt(0)")
    if DIAG:
        stamp(a, 2)
        for r in range(74, 78): a.e(f"s_mov_b32 s{r}, 0")
    srd(a, 4, 24, 25, 2*MB)
    srd(a, 8, 26, 27, 512*3072)
    a.e("s_cmp_eq_u32 s19, 1")
    a.e("s_cselect_b32 s12, s28, s26")
    a.e("s_cselect_b32 s13, s29, s27")
    a.e("s_and_b32 s13, s13, 0xffff")
    a.e("s_lshl_b32 s14, s20, 9")
    a.e("s_mov_b32 s15, 0x00020000")
    def dma_list():
        L = []
        for u in range(4):
            L.append((u*4096, f"buffer_load_dwordx4 v{4+u}, s[4:7], s38 offen lds"))
            if u < 3:
                sr_, so = ("s[8:11]", "s39") if u == 0 else ("s[12:15]", "s43")
                L.append((16384 + (2*u)*4096, f"buffer_load_dwordx4 v{10+2*u}, {sr_}, {so} offen lds"))
                L.append((16384 + (2*u+1)*4096, f"buffer_load_dwordx4 v{10+2*u+1}, {sr_}, {so} offen lds"))
        return L
    def adv_issue():
        a.e("s_add_u32 s38, s38, 128")
        a.e(f"s_add_u32 s39, s39, {64*3072}")
        a.e("s_add_u32 s43, s43, s37")
        a.e("s_cmp_eq_u32 s38, 1024")
        a.e("s_cmov_b32 s38, 0")
        a.e("s_cmov_b32 s39, 0")
        a.e("s_cmov_b32 s43, 0")
        a.e(f"s_add_u32 s40, s40, {STAGE}")
        a.e(f"s_cmp_ge_u32 s40, {4*STAGE}")
        a.e(f"s_cselect_b32 s42, {4*STAGE}, 0")
        a.e("s_sub_u32 s40, s40, s42")
    dl = dma_list()
    def issue(lst):
        for off, ins in lst:
            a.e(f"s_add_u32 m0, s40, {off}")
            a.e("s_nop 0")
            a.e(ins)
    PB = int(os.environ.get("PB", "5"))
    issue(dl); adv_issue()
    a.e("s_mov_b32 s41, 0")
    a.label("K1_steady")
    issue(dl[:PB])
    if DIAG: tic(a)
    a.e(f"s_waitcnt vmcnt({PB})")
    if DIAG: toc(a, 74); tic(a)
    a.e("s_barrier")
    if DIAG: toc(a, 76)
    issue(dl[PB:]); adv_issue()
    a.e("s_add_u32 s41, s41, 1")
    a.e("s_cmp_lt_u32 s41, 7")
    a.e("s_cbranch_scc1 K1_steady")
    if DIAG: stamp(a, 3); stamp(a, 4)
    srd(a, 24, 48, 49, 256)
    srd(a, 28, 50, 51, WS_BYTES)
    a.e("s_lshl_b32 s46, s18, 4")
    a.e("v_mov_b32 v24, 0")
    a.e("v_and_b32 v17, 31, v2")
    a.e("v_lshrrev_b32 v18, 5, v2")
    a.e("s_lshl_b32 s47, s16, 5")
    a.e("v_add_u32 v17, s47, v17")
    a.e("v_lshlrev_b32 v17, 2, v17")
    a.e("v_lshlrev_b32 v6, 1, v17")
    a.e("v_lshl_add_u32 v6, v18, 10, v6")
    a.e(f"s_mul_i32 s42, s18, {22*1024}")
    a.e(f"s_add_u32 s42, s42, {WS_ST}")
    a.e("s_mov_b32 s44, 0x01010101")
    a.e("s_waitcnt vmcnt(0)")
    a.e("s_barrier")
    if DIAG:
        a.e("s_add_u32 s16, s16, 4")
        stamp_flush(a, 7, 50, 51, 16, 0, vt=52)
        a.e("s_sub_u32 s16, s16, 4")
        a.e("s_mov_b64 exec, -1")
    a.e("s_cmp_eq_u32 s19, 1")
    a.e("s_cbranch_scc0 K1_exit")
    a.e("v_mov_b32 v25, 4096")
    a.e("s_cmp_eq_u32 s16, 0")
    a.e("s_cbranch_scc0 K1_nl0")
    a.e("ds_write_b32 v25, v24")
    a.e("s_mov_b64 exec, 1")
    a.e("buffer_load_dwordx4 v[20:23], v24, s[24:27], s46 offen sc1")
    a.e("s_mov_b64 exec, -1")
    a.e("s_waitcnt lgkmcnt(0)")
    a.label("K1_nl0")
    a.e("s_barrier")
    a.e("s_barrier")
    a.e("s_barrier")
    a.e("s_cbranch_scc0 K1_wgo")
    a.e("s_mov_b64 exec, 1")
    a.label("K1_rdy")
    a.e("s_waitcnt vmcnt(0)")
    a.e("v_or_b32 v22, 0x01000000, v22")
    a.e("v_and_b32 v20, v20, v21")
    a.e("v_and_b32 v20, v20, v22")
    a.e("v_cmp_ne_u32 vcc, s44, v20")
    a.e("s_nop 0")
    a.e("s_cbranch_vccz K1_rdy1")
    a.e("s_sleep 16")
    a.e("buffer_load_dwordx4 v[20:23], v24, s[24:27], s46 offen sc1")
    a.e("s_branch K1_rdy")
    a.label("K1_rdy1")
    a.e("ds_write_b32 v25, v25")
    a.e("s_mov_b64 exec, -1")
    a.e("s_branch K1_poll")
    a.label("K1_wgo")
    a.e("s_sleep 2")
    a.e("ds_read_b32 v20, v25")
    a.e("s_waitcnt lgkmcnt(0)")
    a.e("v_cmp_eq_u32 vcc, 0, v20")
    a.e("s_nop 0")
    a.e("s_cbranch_vccnz K1_wgo")
    a.label("K1_poll")
    a.e(f"s_sleep {os.environ.get('K1SLEEP', '8')}")
    a.e("s_mov_b32 s47, s42")
    for i in range(11):
        a.e(f"buffer_load_dwordx2 {vr(20+2*i,2)}, v6, s[28:31], s47 offen offset:{(i&1)*2048} sc1")
        if i & 1: a.e("s_add_u32 s47, s47, 4096")
    a.e("s_waitcnt vmcnt(0)")
    a.e("v_and_b32 v8, v21, v23")
    for i in range(2, 11):
        a.e(f"v_and_b32 v8, v8, v{21+2*i}")
    a.e("v_cmp_le_i32 vcc, 0, v8")
    a.e("s_nop 0")
    a.e("s_cbranch_vccnz K1_poll")
    for i in range(1, 11):
        a.e(f"v_add_f32 v20, v20, v{20+2*i}")
        a.e(f"v_add_f32 v21, v21, v{21+2*i}")
    a.e("v_mov_b32 v22, v20")
    a.e("v_mov_b32 v23, v21")
    a.e("s_nop 1")
    a.e("v_permlane32_swap_b32 v20, v22")
    a.e("v_permlane32_swap_b32 v21, v23")
    a.e("v_add_f32 v20, v20, v22")
    a.e("v_sub_f32 v21, 0, v21")
    a.e("v_sub_f32 v21, v21, v23")
    ln_stats(a, 20, 21, 688, 24, 25, 26)
    a.e("v_mul_f32 v24, v24, v25")
    a.e("ds_write_b32 v17, v24 offset:1024")
    a.e("ds_write_b32 v17, v25 offset:1536")
    a.e("s_waitcnt lgkmcnt(0)")
    a.e("s_barrier")
    a.label("K1_exit")
    a.e("s_endpgm")

    a.label("K1_compute")
    X = [16, 24]; W = [32, 44]; ACC = 64
    AX = 160; AX1 = 164; AWE = 12; AWO = 14; SEL = 56; CS = 244; SA = 8; UT = 168
    a.e("s_lshr_b32 s20, s16, 1")
    a.e("s_and_b32 s21, s16, 1")
    a.e("v_and_b32 v3, 31, v2")
    a.e("v_lshrrev_b32 v4, 5, v2")
    a.e("v_bfe_u32 v5, v3, 1, 3")
    a.e("v_xor_b32 v5, v5, v4")
    a.e("v_lshlrev_b32 v5, 4, v5")
    a.e("s_lshl_b32 s22, s20, 5")
    a.e("v_xor_b32 v5, s22, v5")
    a.e("s_lshl_b32 s22, s16, 5")
    a.e("v_add_u32 v6, s22, v3")
    a.e(f"v_lshl_add_u32 v{AX}, v6, 7, v5")
    for q in range(1, 4):
        a.e(f"v_xor_b32 v{AX+q}, {q<<5}, v{AX}")
    for q in range(4):
        a.e(f"v_xor_b32 v{AX1+q}, 4096, v{AX+q}")
    a.e("v_bfe_u32 v5, v2, 2, 2")
    a.e("v_lshl_add_u32 v6, v4, 3, v5")
    a.e("v_lshlrev_b32 v6, 7, v6")
    a.e("v_bfe_u32 v7, v2, 4, 1")
    a.e("v_lshlrev_b32 v7, 1, v7")
    a.e("v_bfe_u32 v15, v2, 1, 1")
    a.e("v_add_u32 v7, v7, v15")
    a.e("s_lshl_b32 s23, s21, 2")
    a.e("v_add_u32 v7, s23, v7")
    a.e("v_lshrrev_b32 v5, 1, v5")
    a.e("v_lshlrev_b32 v5, 2, v5")
    a.e("v_xor_b32 v7, v7, v5")
    a.e("v_lshl_add_u32 v6, v7, 4, v6")
    a.e("v_and_b32 v15, 1, v2")
    a.e("v_lshl_add_u32 v6, v15, 3, v6")
    a.e("v_add_u32 v6, 16384, v6")
    a.e("s_lshl_b32 s23, s20, 11")
    a.e(f"v_add_u32 v{AWE}, s23, v6")
    a.e(f"v_subrev_u32 v{AWO}, s23, v6")
    a.e("v_lshrrev_b32 v5, 1, v2")
    a.e("v_xor_b32 v5, v5, v2")
    a.e("v_bfe_u32 v5, v5, 3, 1")
    a.e("v_add_u32 v5, -1, v5")
    a.e(f"v_and_b32 v{SEL}, 0x3f803f80, v5")
    for r in range(1, 4):
        a.e(f"v_mov_b32 v{SEL+r}, v{SEL}")
    for r in range(12):
        a.e(f"v_mov_b32 v{CS+r}, 0")
    for r in range(96):
        a.e(f"v_mov_b32 v{ACC+r}, 0")
    if DIAG: a.e("s_mov_b32 s74, 0"); a.e("s_mov_b32 s75, 0")
    a.e("s_mov_b32 s32, 0")
    a.e("s_mov_b32 s33, 0")
    a.e(f"s_mov_b32 s35, {STAGE}")
    a.e("s_waitcnt lgkmcnt(0)")
    srd(a, 12, 50, 51, WS_BYTES)
    srd(a, 8, 48, 49, 256)
    a.e("s_lshl_b32 s44, s16, 5")
    a.e("v_xor_b32 v60, s44, v2")
    a.e("v_lshlrev_b32 v60, 3, v60")
    a.e(f"s_mul_i32 s44, s18, {22*1024}")
    a.e("s_lshl_b32 s45, s17, 11")
    a.e("s_lshl_b32 s46, s21, 10")
    a.e("s_add_u32 s44, s44, s45")
    a.e("s_add_u32 s44, s44, s46")
    a.e(f"s_add_u32 s44, s44, {WS_ST}")
    a.e("s_cmp_eq_u32 s19, 1")
    a.e("s_cbranch_scc0 K1_nozero")
    a.e(f"buffer_store_dwordx2 {vr(ACC,2)}, v60, s[12:15], s44 offen sc1")
    a.label("K1_nozero")
    a.e("s_mov_b32 s45, 0xffff0000")
    for r in range(4): a.e(f"v_mov_b32 v{SA+r}, 0")

    def reads(q, buf):
        r = [f"ds_read_b128 {vr(X[buf],4)}, v{AX+q}"]
        aw = AWO if (q & 1) else AWE
        for s in range(3):
            for p in range(2):
                r.append(f"ds_read_b64_tr_b16 {vr(W[buf]+4*s+2*p,2)}, v{aw} offset:{s*8192+q*2048+p*512}")
        r.append(f"ds_read_b128 {vr(X[buf]+4,4)}, v{AX1+q}")
        return r
    a.e("s_barrier")
    stamp(a, 2)
    for l in reads(0, 0): a.e(l)
    a.e("s_lshl_b32 s46, s18, 4")
    a.e("s_add_u32 s46, s46, s17")
    a.e("v_mov_b32 v61, 1")
    a.e("v_mov_b32 v62, 0")
    a.e("s_cmp_eq_u32 s19, 1")
    a.e("s_cbranch_scc1 K1_loopZ")

    def mainloop(tag, mixed):
        a.label(f"K1_loop{tag}")
        for q in range(4):
            buf = q & 1
            pre = []
            if q == 3:
                addv = [f"v_add_u32 v{r}, s34, v{r}" for r in (AX, AWE, AX1, AX+1, AX+2, AX+3, AX1+1, AX1+2, AX1+3, AWO)]
                rd = reads(0, 0)
            else:
                addv = []
                rd = reads(q + 1, buf ^ 1)
            mf = []
            for aa in range(2):
                for s in range(3):
                    d = ACC + 16*(3*aa + s)
                    if s >= 1 and not mixed:
                        mf.append((d, X[buf]+4*aa, W[buf]+4*s))
                    else:
                        mf.append((d, W[buf]+4*s, X[buf]+4*aa))
            st = []
            for i in range(4):
                r = X[buf] + i; u = UT + 2*(i & 1)
                st += [f"v_lshlrev_b32 v{u}, 16, v{r}", f"v_and_b32 v{u+1}, s45, v{r}", f"v_add_f32 v{SA}, v{SA}, v{u}", f"v_add_f32 v{SA+1}, v{SA+1}, v{u+1}",
                       f"v_fmac_f32 v{SA+2}, v{u}, v{u}", f"v_fmac_f32 v{SA+3}, v{u+1}, v{u+1}"]
            if os.environ.get("NOST"): st = []
            rest = addv[3:] + st
            n = len(rest)
            cut = [0, 0, n*1//12, n*4//12, n*7//12, n*10//12, n]
            fill = [rd[:4], rd[4:], [], [], [], []]
            for k in range(6): fill[k] = fill[k] + rest[cut[k]:cut[k+1]]
            if q == 2:
                fill[4] = fill[4] + [f"s_add_u32 s33, s33, {STAGE}", f"s_cmp_ge_u32 s33, {4*STAGE}"]
                fill[5] = fill[5] + [f"s_cselect_b32 s34, {(-3*STAGE) & 0xffffffff}, s35", "s_cselect_b32 s33, 0, s33"] + [f"v_add_u32 v{r}, s34, v{r}" for r in (AX, AWE, AX1)]
            a.e("s_waitcnt lgkmcnt(3)")
            for k in range(6):
                if k == 2: a.e("s_waitcnt lgkmcnt(8)")
                mfma32(a, mf[k][0], mf[k][1], mf[k][2], mf[k][0])
                if q == 3 and k == 0:
                    if DIAG: a.e("s_waitcnt lgkmcnt(0)"); tic(a)
                    if mixed:
                        a.e("s_cmp_eq_u32 s32, 0")
                        a.e("s_cbranch_scc1 K1_first")
                    a.e("s_barrier")
                    if mixed: a.label("K1_firstback")
                    if DIAG: toc(a, 74)
                for l in fill[k]: a.e(l)
                if q % 2 == 0 and k >= 3:
                    sg = k - 3
                    a.e(f"v_mfma_f32_16x16x32_bf16 {vr(CS+4*sg,4)}, {vr(SEL,4)}, {vr(W[buf]+4*sg,4)}, {vr(CS+4*sg,4)}")
        a.e("s_add_u32 s32, s32, 1")
        a.e("s_cmp_lt_u32 s32, 8")
        a.e(f"s_cbranch_scc1 K1_loop{tag}")

    T = 168; CSB = 184; MU = [200, 202]; RR = [204, 206]; CSL = 208; CSR = 212; RQ = [228, 230]; P = 232
    def exchange():
        a.e("s_waitcnt lgkmcnt(0)")
        stamp(a, 3)
        a.e("v_and_b32 v5, 15, v2")
        a.e("v_lshl_add_u32 v5, v4, 4, v5")
        a.e("s_mul_i32 s22, s20, 768")
        a.e("s_lshl_b32 s23, s21, 7")
        a.e("s_add_u32 s22, s22, s23")
        a.e("s_add_u32 s22, s22, 2048")
        a.e("v_lshl_add_u32 v5, v5, 2, s22")
        a.e("s_lshl_b32 s22, s16, 7")
        a.e("v_lshl_add_u32 v6, v3, 2, s22")
        a.e("v_xor_b32 v7, 128, v6")
        for s in range(3):
            a.e(f"ds_write_b32 v5, v{CS+4*s} offset:{s*256}")
        a.e(f"v_add_f32 v{SA}, v{SA}, v{SA+1}")
        a.e(f"v_add_f32 v{SA+2}, v{SA+2}, v{SA+3}")
        a.e(f"v_mov_b32 v{SA+1}, v{SA}")
        a.e(f"v_mov_b32 v{SA+3}, v{SA+2}")
        a.e("s_nop 1")
        a.e(f"v_permlane32_swap_b32 v{SA}, v{SA+1}")
        a.e(f"v_permlane32_swap_b32 v{SA+2}, v{SA+3}")
        a.e(f"v_add_f32 v{SA}, v{SA}, v{SA+1}")
        a.e(f"v_add_f32 v{SA+2}, v{SA+2}, v{SA+3}")
        ln_stats(a, SA, SA+2, 512, MU[0], RR[0], SA+1)
        a.e(f"ds_write_b32 v6, v{MU[0]}")
        a.e(f"ds_write_b32 v6, v{RR[0]} offset:512")
        a.e("s_add_u32 s23, s23, 2048")
        a.e("v_lshl_add_u32 v10, v4, 4, s23")
        a.e("v_lshl_add_u32 v9, v3, 2, s23")
        a.e("s_lshl_b32 s22, s18, 2")
        a.e("s_add_u32 s22, s22, s16")
        a.e("s_xor_b32 s23, s22, 1")
        a.e("s_and_b32 s34, s17, 7")
        a.e("s_lshl_b32 s34, s34, 8")
        a.e("s_lshl_b32 s35, s21, 7")
        a.e("s_add_u32 s34, s34, s35")
        a.e("s_add_u32 s36, s22, s34")
        a.e("s_add_u32 s37, s23, s34")
        a.e("s_cmp_ge_u32 s17, 8")
        a.e("s_cselect_b32 s38, 11, 10")
        a.e(f"s_cselect_b32 s39, {WS_KV}, 0")
        a.e(f"s_mov_b32 s40, {f32(QSCALE)}")
        a.e("s_cmov_b32 s40, 1.0")
        a.e("s_lshl_b32 s36, s36, s38")
        a.e("s_lshl_b32 s37, s37, s38")
        a.e("s_add_u32 s36, s36, s39")
        a.e("s_add_u32 s37, s37, s39")
        a.e("s_lshl_b32 s41, 64, s38")
        a.e("v_lshlrev_b32 v11, 4, v2")
        a.e("v_add_u32 v15, s41, v11")
        a.e("s_waitcnt lgkmcnt(0)")
        a.e("s_barrier")
        stamp(a, 4)
        a.e(f"ds_read_b32 v{MU[1]}, v7")
        a.e(f"ds_read_b32 v{RR[1]}, v7 offset:512")
    def load_csr(s, dst):
        for i in range(4):
            a.e(f"ds_read_b128 {vr(dst+4*i,4)}, v10 offset:{s*256+i*32}")
            a.e(f"ds_read_b128 {vr(CSB+4*i,4)}, v10 offset:{768+s*256+i*32}")
    def add_csr(dst):
        for i in range(8):
            a.e(f"v_pk_add_f32 {vr(dst+2*i,2)}, {vr(dst+2*i,2)}, {vr(CSB+2*i,2)}")
    def fold_T(d, sl, csr, rr):
        for i in range(8):
            a.e(f"v_pk_fma_f32 {vr(d+2*i,2)}, {vr(csr+2*i,2)}, {vr(MU[sl],2)}, {vr(d+2*i,2)} op_sel_hi:[1,0,1] neg_lo:[0,1,0] neg_hi:[0,1,0]")
        for i in range(8):
            a.e(f"v_pk_mul_f32 {vr(d+2*i,2)}, {vr(d+2*i,2)}, {vr(rr,2)} op_sel_hi:[1,0]")
    def pack(d, half, tmp):
        for i in range(4):
            a.e(f"v_cvt_pk_bf16_f32 v{tmp+i}, v{d+8*half+2*i}, v{d+8*half+2*i+1}")
    def store(tmp, vaddr, soff, off=0):
        a.e(f"buffer_store_dwordx4 {vr(tmp,4)}, v{vaddr}, s[12:15], {soff} offen" + (f" offset:{off}" if off else ""))
    def qk_part(csr):
        for sl in range(2):
            a.e(f"v_mul_f32 v{RQ[sl]}, s40, v{RR[sl]}")
        for sl in range(2):
            d = ACC + 16*(3*sl + 0)
            fold_T(d, sl, csr, RQ[sl])
            pack(d, 0, P); store(P, 11, f"s{36+sl}")
            pack(d, 1, P+4); store(P+4, 15, f"s{36+sl}")

    mainloop("Q", False)
    exchange()
    load_csr(0, CSR)
    for s in range(2):
        a.e(f"ds_read_b32 v{CSL+2*s}, v9 offset:{256*(s+1)}")
        a.e(f"ds_read_b32 v{CSL+2*s+1}, v9 offset:{768+256*(s+1)}")
    a.e("s_lshl_b32 s34, s16, 7")
    a.e("v_lshl_add_u32 v8, v4, 4, s34")
    a.e("v_xor_b32 v19, 128, v8")
    a.e("s_sub_u32 s34, s17, 11")
    a.e("s_lshl_b32 s34, s34, 8")
    a.e("s_add_u32 s34, s34, s35")
    a.e("s_add_u32 s42, s22, s34")
    a.e("s_add_u32 s43, s23, s34")
    a.e("s_lshl_b32 s42, s42, 11")
    a.e("s_lshl_b32 s43, s43, 11")
    a.e(f"s_add_u32 s42, s42, {WS_KV}")
    a.e(f"s_add_u32 s43, s43, {WS_KV}")
    a.e(f"s_add_u32 s44, s42, {5*256*2048}")
    a.e(f"s_add_u32 s45, s43, {5*256*2048}")
    a.e("v_bfe_u32 v17, v2, 4, 1")
    a.e("v_lshlrev_b32 v17, 17, v17")
    a.e("v_and_b32 v18, 15, v2")
    a.e("v_lshl_add_u32 v18, v4, 4, v18")
    a.e("v_lshl_add_u32 v17, v18, 4, v17")
    VM = [20, 168]; VR = [36, 184]
    def load_v(sl):
        for i in range(4):
            a.e(f"ds_read_b128 {vr(VM[sl]+4*i,4)}, v{(8,19)[sl]} offset:{i*32}")
            a.e(f"ds_read_b128 {vr(VR[sl]+4*i,4)}, v{(8,19)[sl]} offset:{512+i*32}")
    a.e("s_waitcnt lgkmcnt(0)")
    add_csr(CSR)
    a.e(f"v_add_f32 v{CSL}, v{CSL}, v{CSL+1}")
    a.e(f"v_add_f32 v{CSL+2}, v{CSL+2}, v{CSL+3}")
    load_v(0); load_v(1)
    qk_part(CSR)
    a.e("s_waitcnt lgkmcnt(0)")
    for s in range(1, 3):
        if s == 2:
            a.e("s_cmp_ge_u32 s17, 14")
            a.e("s_cbranch_scc1 K1_qdone")
        for sl in range(2):
            d = ACC + 16*(3*sl + s)
            for i in range(8):
                a.e(f"v_pk_fma_f32 {vr(d+2*i,2)}, {vr(VM[sl]+2*i,2)}, {vr(CSL+2*(s-1),2)}, {vr(d+2*i,2)} op_sel_hi:[1,0,1] neg_lo:[0,1,0] neg_hi:[0,1,0]")
            for i in range(8):
                a.e(f"v_pk_mul_f32 {vr(d+2*i,2)}, {vr(d+2*i,2)}, {vr(VR[sl]+2*i,2)}")
            so_ = f"s{42+2*(s-1)+sl}"
            pack(d, 0, P+8); store(P+8, 17, so_, 1024)
            pack(d, 1, P); store(P, 17, so_, 1536)
    a.label("K1_qdone")
    if not DIAG: stamp(a, 5)
    stamp(a, 6)
    stamp_flush(a, 7, 50, 51, 16, 0); a.e("s_endpgm")

    a.label("K1_first")
    a.e("s_waitcnt vmcnt(0)")
    a.e("s_barrier")
    a.e("s_cmp_eq_u32 s16, 0")
    a.e("s_cbranch_scc0 K1_firstback")
    a.e("s_mov_b64 exec, 1")
    a.e("buffer_store_byte v61, v62, s[8:11], s46 offen sc1")
    a.e("s_mov_b64 exec, -1")
    a.e("s_branch K1_firstback")
    mainloop("Z", True)
    exchange()
    load_csr(1, CSR)
    C1 = 16; C0 = 18; ONE = 20; G = 24; S1 = [32, 34]; S2 = [36, 38]; PZ = 40
    k0 = -2.0 * LOG2E * 0.7978845608028654
    a.e(f"v_mov_b32 v{C0}, {f32(k0)}")
    a.e(f"v_mov_b32 v{C1}, {f32(k0*0.044715)}")
    a.e(f"v_mov_b32 v{ONE}, 1.0")
    for r in range(32, 40): a.e(f"v_mov_b32 v{r}, 0")
    a.e("s_mul_i32 s42, s22, 43")
    a.e("s_mul_i32 s43, s23, 43")
    a.e("s_lshl_b32 s34, s17, 2")
    a.e("s_lshl_b32 s35, s21, 1")
    a.e("s_add_u32 s34, s34, s35")
    a.e("s_add_u32 s42, s42, s34")
    a.e("s_add_u32 s43, s43, s34")
    a.e("s_lshl_b32 s42, s42, 10")
    a.e("s_lshl_b32 s43, s43, 10")
    a.e(f"s_add_u32 s42, s42, {WS_Z1F}")
    a.e(f"s_add_u32 s43, s43, {WS_Z1F}")
    def gelu_half(d):
        for i in range(4):
            a.e(f"v_pk_mul_f32 {vr(G+2*i,2)}, {vr(d+2*i,2)}, {vr(d+2*i,2)}")
        for i in range(4):
            a.e(f"v_pk_fma_f32 {vr(G+2*i,2)}, {vr(G+2*i,2)}, {vr(C1,2)}, {vr(C0,2)} op_sel_hi:[1,0,0]")
        for i in range(4):
            a.e(f"v_pk_mul_f32 {vr(G+2*i,2)}, {vr(G+2*i,2)}, {vr(d+2*i,2)}")
        for i in range(8):
            a.e(f"v_exp_f32 v{G+i}, v{G+i}")
        for i in range(4):
            a.e(f"v_pk_add_f32 {vr(G+2*i,2)}, {vr(G+2*i,2)}, {vr(ONE,2)} op_sel_hi:[1,0]")
        for i in range(8):
            a.e(f"v_rcp_f32 v{G+i}, v{G+i}")
        for i in range(4):
            a.e(f"v_pk_mul_f32 {vr(d+2*i,2)}, {vr(d+2*i,2)}, {vr(G+2*i,2)}")
    a.e("s_waitcnt lgkmcnt(0)")
    add_csr(CSR)
    load_csr(2, T)
    for sl in range(2):
        d = ACC + 16*(3*sl + 1)
        fold_T(d, sl, CSR, RR[sl])
        for half in range(2):
            if half == 1:
                a.e("s_cmp_eq_u32 s34, 42")
                a.e(f"s_cbranch_scc1 K1_noblk{sl}")
            gelu_half(d + 8*half)
            for i in range(4):
                a.e(f"v_pk_add_f32 {vr(S1[sl],2)}, {vr(S1[sl],2)}, {vr(d+8*half+2*i,2)}")
                a.e(f"v_pk_fma_f32 {vr(S2[sl],2)}, {vr(d+8*half+2*i,2)}, {vr(d+8*half+2*i,2)}, {vr(S2[sl],2)}")
            if half == 1:
                a.label(f"K1_noblk{sl}")
    for r in S1 + S2:
        a.e(f"v_add_f32 v{r}, v{r}, v{r+1}")
    a.e("s_nop 1")
    a.e(f"v_permlane32_swap_b32 v{S1[0]}, v{S1[1]}")
    a.e(f"v_permlane32_swap_b32 v{S2[0]}, v{S2[1]}")
    a.e(f"v_add_f32 v{S1[0]}, v{S1[0]}, v{S1[1]}")
    a.e(f"v_add_f32 v{S1[0]+1}, v{S2[0]}, v{S2[1]}")
    a.e(f"v_or_b32 v{S1[0]+1}, 0x80000000, v{S1[0]+1}")
    a.e(f"buffer_store_dwordx2 {vr(S1[0],2)}, v60, s[12:15], s44 offen sc1")
    a.e("s_barrier")
    a.e("s_waitcnt lgkmcnt(0)")
    add_csr(T)
    load_csr(0, CSR)
    for sl in range(2):
        d = ACC + 16*(3*sl + 2)
        fold_T(d, sl, T, RR[sl])
        for half in range(2):
            gelu_half(d + 8*half)
            pack(d, half, PZ + 8*sl + 4*half)
    for sl in range(2):
        store(PZ + 8*sl, 11, f"s{42+sl}")
    a.e("s_cmp_eq_u32 s34, 42")
    a.e("s_cbranch_scc1 K1_noz1")
    for sl in range(2):
        store(PZ + 8*sl + 4, 11, f"s{42+sl}", 1024)
    a.label("K1_noz1")
    a.e("s_waitcnt lgkmcnt(0)")
    add_csr(CSR)
    qk_part(CSR)
    a.e("s_lshl_b32 s35, s16, 13")
    a.e("s_add_u32 s35, s35, 8192")
    a.e(f"v_mul_u32_u24 v16, {RST}, v3")
    a.e("v_lshl_add_u32 v16, v4, 3, v16")
    a.e("v_add_u32 v16, s35, v16")
    a.e("v_bfe_u32 v17, v2, 2, 2")
    a.e("v_lshl_add_u32 v17, v4, 3, v17")
    a.e(f"v_mul_u32_u24 v17, {RST}, v17")
    a.e("v_bfe_u32 v18, v2, 4, 1")
    a.e("v_lshl_add_u32 v17, v18, 5, v17")
    a.e("v_and_b32 v18, 3, v2")
    a.e("v_lshl_add_u32 v17, v18, 3, v17")
    a.e("v_add_u32 v17, s35, v17")
    a.e("s_lshr_b32 s34, s34, 1")
    a.e("s_mul_i32 s35, s34, 43")
    a.e("s_lshr_b32 s35, s35, 7")
    a.e("s_mul_i32 s44, s35, 3")
    a.e("s_sub_u32 s44, s34, s44")
    a.e("s_lshl_b32 s44, s44, 10")
    a.e("s_mul_i32 s35, s35, 393216")
    a.e("s_add_u32 s44, s44, s35")
    a.e(f"s_add_u32 s44, s44, {WS_Z2F}")
    a.e("s_mul_i32 s46, s22, 6144")
    a.e("s_mul_i32 s47, s23, 6144")
    a.e("s_add_u32 s46, s46, s44")
    a.e("s_add_u32 s47, s47, s44")
    if not DIAG: stamp(a, 5)
    a.e("s_barrier")
    stamp(a, 6)
    a.e(f"ds_read_b32 v{MU[0]}, v6 offset:1024")
    a.e(f"ds_read_b32 v{RR[0]}, v6 offset:1536")
    a.e(f"ds_read_b32 v{MU[1]}, v7 offset:1024")
    a.e(f"ds_read_b32 v{RR[1]}, v7 offset:1536")
    for sl in range(2):
        d = ACC + 16*(3*sl + 1)
        a.e(f"s_waitcnt lgkmcnt({2 if sl == 0 else 4})")
        for i in range(8):
            a.e(f"v_pk_fma_f32 {vr(d+2*i,2)}, {vr(d+2*i,2)}, {vr(RR[sl],2)}, {vr(MU[sl],2)} op_sel_hi:[1,0,0] neg_lo:[0,0,1] neg_hi:[0,0,1]")
        for i in range(8):
            a.e(f"v_cvt_pk_bf16_f32 v{PZ+8*sl+i}, v{d+2*i}, v{d+2*i+1}")
        for i in range(4):
            a.e(f"ds_write_b64 v16, {vr(PZ+8*sl+2*i,2)} offset:{sl*32*RST+16*i}")
    for sl in range(2):
        for kb in range(2):
            for p in range(2):
                a.e(f"ds_read_b64_tr_b16 {vr(T+8*sl+4*kb+2*p,2)}, v17 offset:{(32*sl+16*kb+4*p)*RST}")
    for sl in range(2):
        for kb in range(2):
            a.e(f"s_waitcnt lgkmcnt({6-4*sl-2*kb})")
            store(T+8*sl+4*kb, 11, f"s{46+sl}", 3072*kb)
    stamp_flush(a, 7, 50, 51, 16, 0); a.e("s_endpgm")
    return name, kernel_desc(name, 256, 102 if STAMP else 56), f"; @launch kernel={name} grid=(256,1,1) block=(512,1,1) lds=163840"
```

```python
from common import *

BIAS = 64.0
RING = 0
GST = 65536
NRM = 131072
FLG = 160768
LDS_TOTAL = 163840
WS_FLAGS = WS_CNT

def gen_k2(a):
    name = "mix_kernel"
    kernel_head(a, name)
    a.e("s_cmp_ge_u32 s2, 256")
    a.e("s_cbranch_scc1 M_exit")
    a.e("s_load_dwordx2 s[30:31], s[0:1], 80")
    a.e("s_load_dwordx4 s[24:27], s[0:1], 40")
    a.e("v_lshrrev_b32 v1, 6, v0")
    a.e("v_and_b32 v2, 63, v0")
    a.e("v_readfirstlane_b32 s16, v1")
    a.e("v_lshlrev_b32 v3, 2, v2")
    a.e(f"v_add_u32 v3, {FLG}, v3")
    a.e("v_mov_b32 v4, 0")
    a.e("ds_write_b32 v3, v4")
    stamp_rt(a, 0); stamp(a, 1)
    if DIAG:
        for r in range(72, 78): a.e(f"s_mov_b32 s{r}, 0")
    a.e("s_waitcnt lgkmcnt(0)")
    a.e("s_barrier")
    a.e("s_cmp_ge_u32 s16, 8")
    a.e("s_cbranch_scc1 M_gemm")
    attn(a)
    a.label("M_exit")
    a.e("s_endpgm")
    a.label("M_gemm")
    gemm_role(a)
    return name, kernel_desc(name, 168, 102 if STAMP else 56), f"; @launch kernel={name} grid=(256,1,1) block=(768,1,1) lds={LDS_TOTAL}"

def attn(a):
    Q = [4, 8]; CM = [12, 28]; S = [44, 60]; P = [76, 84]; O = [92, 108]; K = 124; V = [128, 136]
    AK = 144; AV = 145; VD = 146; FA = 147; FW = 148; FV = 149; T = 150; CNT = 151; L16 = 152; THR = 153
    AMAP = int(os.environ.get("AMAP", "0"))
    PV1 = 4; PV2 = 10
    if AMAP == 0:
        a.e("s_and_b32 s17, s2, 7")
        a.e("s_lshl_b32 s17, s17, 2")
        a.e("s_bfe_u32 s18, s2, 0x20003")
        a.e("s_or_b32 s17, s17, s18")
        a.e("s_lshr_b32 s18, s2, 5")
    else:
        a.e("s_lshr_b32 s17, s2, 3")
        a.e("s_and_b32 s18, s2, 7")
    a.e("s_and_b32 s19, s16, 3")
    a.e("s_lshr_b32 s33, s16, 2")
    a.e(f"v_lshlrev_b32 v{L16}, 4, v2")
    a.e("s_lshl_b32 s23, s19, 11")
    a.e(f"v_add_u32 v{VD}, s23, v{L16}")
    a.e("s_lshl_b32 s24, s17, 17")
    a.e(f"s_add_u32 s24, s24, {WS_KV}")
    a.e("s_lshl_b32 s20, s33, 16")
    a.e("s_add_u32 s20, s20, s24")
    a.e("s_lshl_b32 s21, s18, 3")
    a.e("s_lshl_b32 s22, s19, 1")
    a.e("s_add_u32 s21, s21, s22")
    a.e("s_lshl_b32 s22, s17, 6")
    a.e("s_add_u32 s22, s22, s21")
    a.e("s_lshl_b32 s22, s22, 10")
    a.e("s_lshl_b32 s34, s33, 15")
    a.e("s_add_u32 s23, s23, s34")
    a.e("s_waitcnt lgkmcnt(0)")
    srd(a, 12, 30, 31, WS_BYTES)
    def dma_chunk(slot):
        a.e(f"s_add_u32 m0, s23, {slot*8192}")
        a.e("s_add_u32 s20, s20, 8192")
        a.e(f"buffer_load_dwordx4 v{VD}, s[12:15], s20 offen lds")
        a.e(f"buffer_load_dwordx4 v{VD}, s[12:15], s20 offen offset:1024 lds")
    a.e("s_sub_u32 s20, s20, 8192")
    a.e(f"buffer_load_dwordx4 {vr(Q[0],4)}, v{L16}, s[12:15], s22 offen")
    a.e(f"buffer_load_dwordx4 {vr(S[1],4)}, v{L16}, s[12:15], s24 offen")
    a.e(f"buffer_load_dwordx4 {vr(Q[1],4)}, v{L16}, s[12:15], s22 offen offset:1024")
    for c in range(3): dma_chunk(c)
    a.e(f"v_lshlrev_b32 v{T}, 2, v2")
    a.e(f"v_add_u32 v{T}, {FLG}, v{T}")
    a.e(f"v_and_b32 v{FA}, 7, v2")
    a.e(f"v_lshlrev_b32 v{FA}, 2, v{FA}")
    a.e("s_lshl_b32 s36, s33, 5")
    a.e(f"s_add_u32 s36, s36, {FLG}")
    a.e(f"v_add_u32 v{FA}, s36, v{FA}")
    a.e(f"v_add_u32 v{FW}, 256, v{T}")
    a.e("s_lshl_b32 s37, s19, 2")
    a.e("s_add_u32 s37, s37, s36")
    a.e(f"v_writelane_b32 v{FW}, s37, 0")
    a.e(f"v_add_u32 v{AK}, s34, v{L16}")
    a.e(f"v_and_b32 v{AV}, 15, v2")
    a.e(f"v_lshlrev_b32 v{AV}, 4, v{AV}")
    a.e(f"v_lshrrev_b32 v{T}, 5, v2")
    a.e(f"v_lshl_add_u32 v{AV}, v{T}, 8, v{AV}")
    a.e("s_add_u32 s38, s34, 1024")
    a.e(f"v_add_u32 v{AV}, s38, v{AV}")
    a.e("s_mov_b32 s26, 0x0000ffff")
    a.e("s_mov_b32 s27, 0x0000ffff")
    a.e("s_mov_b32 s40, 0x0f0f0f0f")
    a.e("s_mov_b32 s41, 0x0f0f0f0f")
    a.e("s_mov_b32 s42, 0xf0f0f0f0")
    a.e("s_mov_b32 s43, 0xf0f0f0f0")
    a.e(f"v_and_b32 v{T}, 27, v2")
    a.e(f"v_cmp_eq_u32 vcc, 16, v{T}")
    a.e(f"v_mov_b32 v{T}, 0x3f803f80")
    a.e(f"v_bfe_u32 v{THR}, v2, 2, 1")
    a.e(f"v_lshlrev_b32 v{THR}, 1, v{THR}")
    a.e(f"v_sub_u32 v{THR}, 2, v{THR}")
    a.e(f"v_cndmask_b32 v{V[0]}, 0, v{T}, vcc")
    for r in range(1, 16): a.e(f"v_mov_b32 v{V[0]+r}, v{V[0]}")
    for r in range(32): a.e(f"v_mov_b32 v{O[0]+r}, 0")
    for r in range(8): a.e(f"v_mov_b32 v{P[1]+r}, 0")
    def rowmax(src, dst):
        a.e(f"v_max3_f32 v{dst}, v{src}, v{src+1}, v{src+2}")
        for i in range(3, 15, 2):
            a.e(f"v_max3_f32 v{dst}, v{dst}, v{src+i}, v{src+i+1}")
        a.e(f"v_max_f32 v{dst}, v{dst}, v{src+15}")
    def cross_half_max(dst, tmp):
        a.e(f"v_mov_b32 v{tmp}, v{dst}")
        a.e("s_nop 1")
        a.e(f"v_permlane32_swap_b32 v{dst}, v{tmp}")
        a.e(f"v_max_f32 v{dst}, v{dst}, v{tmp}")
    a.e("s_waitcnt vmcnt(6)")
    mfma32(a, CM[0], S[1], Q[0], "0")
    mfma32(a, CM[1], S[1], Q[1], "0")
    a.e("s_waitcnt vmcnt(4)")
    a.e(f"v_mov_b32 v{CNT}, 1")
    a.e(f"ds_write_b32 v{FW}, v{CNT}")
    a.e("s_nop 7")
    for qb in range(2):
        rowmax(CM[qb], T)
        cross_half_max(T, FV)
        a.e(f"v_sub_f32 v{CM[qb]}, {f32(-BIAS)}, v{T}")
        for r in range(1, 16): a.e(f"v_mov_b32 v{CM[qb]+r}, v{CM[qb]}")
    a.label("AT_spin0")
    a.e(f"ds_read_b32 v{FV}, v{FA}")
    a.e("s_waitcnt lgkmcnt(0)")
    a.e(f"v_cmp_gt_u32 vcc, 1, v{FV}")
    a.e("s_nop 0")
    a.e("s_and_b64 vcc, vcc, s[40:41]")
    a.e("s_cbranch_vccnz AT_spin0")
    stamp(a, 2)
    a.e(f"ds_read_b128 {vr(K,4)}, v{AK}")
    a.e("s_mov_b32 s28, 0")
    a.e("s_waitcnt lgkmcnt(0)")
    mfma32(a, S[0], K, Q[0], CM[0])
    a.e("s_nop 9")
    a.label("AT_loop")
    for cc in range(4):
      for kb in range(4):
        for qb in range(2):
            a.c(f"tile cc={cc} kb={kb} qb={qb}")
            if qb == 1:
                a.e("s_waitcnt lgkmcnt(0)")
            if (kb, qb) == (3, 0):
                a.e(f"v_cmp_gt_u32 vcc, v{THR}, v{FV}")
                a.e(f"v_add_u32 v{THR}, 1, v{THR}")
                a.e(f"s_cbranch_vccnz AT_slow{cc}")
                a.label(f"AT_back{cc}")
            mfma32(a, S[qb^1], K, Q[qb^1], CM[qb^1])
            if qb == 0:
                a.e(f"ds_read_b128 {vr(K,4)}, v{AK} offset:{((4*cc+kb+1)&15)*2048}")
                a.e("s_mov_b64 exec, s[26:27]")
                a.e(f"ds_read_b128 {vr(V[kb&1],4)}, v{AV} offset:{(4*cc+kb)*2048}")
                a.e(f"ds_read_b128 {vr(V[kb&1]+4,4)}, v{AV} offset:{(4*cc+kb)*2048+512}")
                a.e("s_mov_b64 exec, -1")
                if kb == 2:
                    a.e(f"ds_read_b32 v{FV}, v{FA}")
                if kb == 3:
                    a.e(f"ds_write_b32 v{FW}, v{CNT} offset:16")
                    if cc > 0:
                        a.e("s_cmp_eq_u32 s28, 0")
                        a.e(f"s_cbranch_scc0 AT_nodma{cc}")
                    if DIAG: tic(a)
                    dma_chunk((cc + 3) & 3)
                    if DIAG: toc(a, 76)
                    if cc > 0:
                        a.label(f"AT_dmaback{cc}")
                if kb == 1:
                    a.e(f"v_add_u32 v{T}, 1, v{CNT}")
                    if DIAG: tic(a)
                    a.e("s_waitcnt vmcnt(2)")
                    if DIAG: toc(a, 72)
                    a.e(f"ds_write_b32 v{FW}, v{T}")
            if (kb, qb) == (3, 1):
                a.e(f"v_add_u32 v{CNT}, 1, v{CNT}")
            s = S[qb]; p = P[qb]
            vb = V[(kb - 1) & 1] if qb == 0 else V[kb & 1]
            for i in range(16):
                a.e(f"v_exp_f32 v{s+i}, v{s+i}")
                if i % 2 == 1 and 3 <= i <= 13:
                    k = (i - 3) // 2
                    a.e(f"v_cvt_pk_bf16_f32 v{p+k}, v{s+2*k}, v{s+2*k+1}")
                if i == PV1:
                    mfma32(a, O[qb^1], vb, P[qb^1], O[qb^1])
                if i == PV2:
                    mfma32(a, O[qb^1], vb+4, P[qb^1]+4, O[qb^1])
            a.e(f"v_cvt_pk_bf16_f32 v{p+6}, v{s+12}, v{s+13}")
            a.e(f"v_cvt_pk_bf16_f32 v{p+7}, v{s+14}, v{s+15}")
    a.e("s_add_u32 s28, s28, 1")
    a.e("s_cmp_lt_u32 s28, 2")
    a.e("s_cbranch_scc1 AT_loop")
    stamp(a, 3)
    mfma32(a, O[1], V[1], P[1], O[1])
    mfma32(a, O[1], V[1]+4, P[1]+4, O[1])
    a.e("s_lshl_b32 s37, s19, 2")
    a.e(f"s_add_u32 s37, s37, {FLG+80}")
    a.e(f"v_mov_b32 v{T}, s37")
    a.e(f"v_mov_b32 v{CNT}, 1")
    a.e("s_mov_b64 exec, 1")
    a.e(f"ds_add_rtn_u32 v{FV}, v{T}, v{CNT}")
    a.e("s_mov_b64 exec, -1")
    a.e("s_lshl_b32 s36, s19, 12")
    a.e("s_add_u32 s37, s36, s34")
    a.e(f"v_add_u32 v{AK}, s37, v{L16}")
    a.e("s_xor_b32 s38, s33, 1")
    a.e("s_lshl_b32 s38, s38, 15")
    a.e("s_add_u32 s38, s38, s36")
    a.e(f"v_add_u32 v{AV}, s38, v{L16}")
    a.e(f"v_lshlrev_b32 v{VD}, 3, v2")
    a.e("s_lshl_b32 s37, s19, 9")
    a.e(f"s_add_u32 s37, s37, {FLG+768}")
    a.e(f"v_add_u32 v{VD}, s37, v{VD}")
    a.e("s_waitcnt lgkmcnt(0)")
    a.e(f"v_readfirstlane_b32 s37, v{FV}")
    a.e(f"v_mov_b32 v{O[0]+9}, v{O[1]+8}")
    a.e("s_nop 3")
    a.e("s_cmp_eq_u32 s37, 0")
    a.e("s_cbranch_scc0 AT_last")
    a.label("AT_wfree")
    a.e(f"ds_read_b32 v{FV}, v{FA}")
    a.e("s_waitcnt lgkmcnt(0)")
    a.e(f"v_cmp_gt_u32 vcc, 6, v{FV}")
    a.e("s_nop 0")
    a.e("s_and_b64 vcc, vcc, s[42:43]")
    a.e("s_cbranch_vccnz AT_wfree")
    for qb in range(2):
        for k in range(2):
            a.e(f"ds_write_b128 v{AK}, {vr(O[qb]+4*k,4)} offset:{(2*qb+k)*1024}")
    a.e(f"ds_write_b64 v{VD}, {vr(O[0]+8,2)}")
    a.e(f"ds_write_b32 v{T}, v{CNT} offset:16")
    stamp_flush(a, 7 if DIAG else 4, 30, 31, 16, 1, vt=156)
    a.e("s_endpgm")
    a.label("AT_last")
    a.e(f"ds_read_b32 v{FV}, v{T} offset:16")
    a.e("s_waitcnt lgkmcnt(0)")
    a.e(f"v_cmp_eq_u32 vcc, 0, v{FV}")
    a.e("s_nop 0")
    a.e("s_cbranch_vccnz AT_last")
    for qb in range(2):
        for k in range(2):
            a.e(f"ds_read_b128 {vr(S[qb]+4*k,4)}, v{AV} offset:{(2*qb+k)*1024}")
    a.e(f"ds_read_b64 {vr(S[0]+8,2)}, v{VD}")
    a.e("s_mul_i32 s29, s21, 75")
    a.e("s_add_u32 s29, s29, s17")
    a.e("s_lshl_b32 s29, s29, 10")
    a.e(f"s_add_u32 s29, s29, {WS_ACT}")
    a.e("s_mov_b32 s36, 0x7f800000")
    a.e(f"s_mov_b32 s37, {f32(2.0**-100)}")
    a.e("s_waitcnt lgkmcnt(0)")
    a.e(f"v_mov_b32 v{S[1]+8}, v{S[0]+9}")
    a.e("s_mov_b64 s[38:39], 0")
    a.c("safety check of the stand-in max: overflow / NaN / vanishing magnitudes -> redo with the true max")
    for qb in range(2):
        o = O[qb]
        for i in range(9):
            a.e(f"v_add_f32 v{o+i}, v{o+i}, v{S[qb]+i}")
        a.e(f"v_add_f32 v{T}, abs(v{o}), abs(v{o+8})")
        for i in range(1, 8):
            a.e(f"v_add_f32 v{T}, abs(v{o+i}), v{T}")
        a.e(f"v_min3_f32 v{FV}, abs(v{o}), abs(v{o+1}), abs(v{o+2})")
        for i in range(3, 7, 2):
            a.e(f"v_min3_f32 v{FV}, v{FV}, abs(v{o+i}), abs(v{o+i+1})")
        a.e(f"v_min_f32 v{FV}, v{FV}, abs(v{o+7})")
        a.e(f"v_cmp_ngt_f32 vcc, s36, v{T}")
        a.e(f"v_cmp_gt_f32 s[46:47], s37, v{FV}")
        a.e("s_or_b64 s[38:39], s[38:39], vcc")
        a.e("s_nop 0")
        a.e("s_or_b64 s[38:39], s[38:39], s[46:47]")
    a.e("s_cmp_lg_u64 s[38:39], 0")
    if os.environ.get("FORCE_SLOW"):
        a.e("s_branch AT_redo")
    a.e("s_cbranch_scc1 AT_redo")
    a.label("AT_fin")
    for qb in range(2):
        o = O[qb]
        a.e(f"v_rcp_f32 v{T}, v{o+8}")
        a.e("s_nop 0")
        for i in range(8):
            a.e(f"v_mul_f32 v{o+i}, v{o+i}, v{T}")
        for i in range(4):
            a.e(f"v_cvt_pk_bf16_f32 v{P[qb]+i}, v{o+2*i}, v{o+2*i+1}")
        a.e(f"buffer_store_dwordx4 {vr(P[qb],4)}, v{L16}, s[12:15], s29 offen")
        a.e(f"s_add_u32 s29, s29, {75*1024}")
    stamp_flush(a, 7 if DIAG else 4, 30, 31, 16, 1, vt=156)
    a.e("s_endpgm")
    for cc in range(4):
        a.label(f"AT_slow{cc}")
        if DIAG: a.e(f"s_add_u32 s74, s74, 1")
        a.e("s_sleep 2")
        a.e(f"ds_read_b32 v{FV}, v{FA}")
        a.e("s_waitcnt lgkmcnt(0)")
        a.c("THR was already advanced: ready iff FV+1 >= THR")
        a.e(f"v_add_u32 v{FV}, 1, v{FV}")
        a.e(f"v_cmp_gt_u32 vcc, v{THR}, v{FV}")
        a.e("s_nop 0")
        a.e(f"s_cbranch_vccnz AT_slow{cc}")
        a.e(f"s_branch AT_back{cc}")
        if cc > 0:
            a.label(f"AT_nodma{cc}")
            a.e("s_waitcnt vmcnt(0)")
            a.e(f"s_branch AT_dmaback{cc}")
    a.label("AT_redo")
    a.e(f"v_mov_b32 v{T}, 0xff800000")
    a.e(f"v_mov_b32 v{CNT}, 0xff800000")
    a.e("s_mov_b32 s20, s24")
    a.e("s_mov_b32 s28, 0")
    a.label("AT_r1")
    a.e(f"buffer_load_dwordx4 {vr(K,4)}, v{L16}, s[12:15], s20 offen")
    a.e("s_waitcnt vmcnt(0)")
    mfma32(a, S[0], K, Q[0], "0")
    mfma32(a, S[1], K, Q[1], "0")
    a.e("s_add_u32 s20, s20, 2048")
    a.e("s_add_u32 s28, s28, 1")
    a.e("s_nop 11")
    for i in range(0, 16, 2):
        a.e(f"v_max3_f32 v{T}, v{T}, v{S[0]+i}, v{S[0]+i+1}")
        a.e(f"v_max3_f32 v{CNT}, v{CNT}, v{S[1]+i}, v{S[1]+i+1}")
    a.e("s_cmp_lt_u32 s28, 64")
    a.e("s_cbranch_scc1 AT_r1")
    for qb, m in ((0, T), (1, CNT)):
        cross_half_max(m, FV)
        a.e(f"v_sub_f32 v{CM[qb]}, 0, v{m}")
        for r in range(1, 16): a.e(f"v_mov_b32 v{CM[qb]+r}, v{CM[qb]}")
    for r in range(32): a.e(f"v_mov_b32 v{O[0]+r}, 0")
    a.e(f"v_and_b32 v{AV}, 15, v2")
    a.e(f"v_lshlrev_b32 v{AV}, 4, v{AV}")
    a.e(f"v_lshrrev_b32 v{T}, 5, v2")
    a.e(f"v_lshl_add_u32 v{AV}, v{T}, 8, v{AV}")
    a.e("s_mov_b32 s20, s24")
    a.e("s_mov_b32 s28, 0")
    a.label("AT_r2")
    a.e(f"buffer_load_dwordx4 {vr(K,4)}, v{L16}, s[12:15], s20 offen")
    a.e("s_mov_b64 exec, s[26:27]")
    a.e(f"buffer_load_dwordx4 {vr(V[0],4)}, v{AV}, s[12:15], s20 offen offset:1024")
    a.e(f"buffer_load_dwordx4 {vr(V[0]+4,4)}, v{AV}, s[12:15], s20 offen offset:1536")
    a.e("s_mov_b64 exec, -1")
    a.e("s_waitcnt vmcnt(0)")
    mfma32(a, S[0], K, Q[0], CM[0])
    mfma32(a, S[1], K, Q[1], CM[1])
    a.e("s_add_u32 s20, s20, 2048")
    a.e("s_add_u32 s28, s28, 1")
    a.e("s_nop 11")
    for qb in range(2):
        for i in range(16): a.e(f"v_exp_f32 v{S[qb]+i}, v{S[qb]+i}")
        a.e("s_nop 0")
        for k in range(8): a.e(f"v_cvt_pk_bf16_f32 v{P[qb]+k}, v{S[qb]+2*k}, v{S[qb]+2*k+1}")
        a.e("s_nop 1")
        mfma32(a, O[qb], V[0], P[qb], O[qb])
        mfma32(a, O[qb], V[0]+4, P[qb]+4, O[qb])
    a.e("s_cmp_lt_u32 s28, 64")
    a.e("s_cbranch_scc1 AT_r2")
    a.e("s_nop 11")
    a.e("s_branch AT_fin")

RSZ = 1552
def gemm_role(a):
    W = 48
    GF = 164; GW = 165; GV = 166; GC = 167
    if os.environ.get("NOGEMM"):
        stamp(a, 2); stamp(a, 3); stamp_flush(a, 7 if DIAG else 4, 30, 31, 16, 1, vt=4); a.e("s_endpgm"); a.label("G_dead")
    a.e(f"s_setprio {os.environ.get('GPRIO', '2')}")
    a.e(f"s_sub_u32 s{W}, s16, 8")
    ACC = 64; ZF = [16, 28, 40]; WF = [4, 52]
    AE = 60; AO = 61; AZ = 62; AB = 160
    a.e("s_and_b32 s17, s2, 7")
    a.e("s_lshl_b32 s17, s17, 2")
    a.e("s_bfe_u32 s18, s2, 0x20003")
    a.e("s_or_b32 s17, s17, s18")
    a.e("s_lshr_b32 s18, s2, 5")
    srd(a, 12, 30, 31, WS_BYTES)
    srd(a, 4, 24, 25, 8*MB)
    a.e(f"v_lshrrev_b32 v{AZ}, 4, v2")
    a.e("v_and_b32 v11, 7, v2")
    a.e(f"v_xor_b32 v{AZ}, v{AZ}, v11")
    a.e(f"v_lshlrev_b32 v{AZ}, 4, v{AZ}")
    a.e("v_lshrrev_b32 v11, 3, v2")
    a.e(f"v_lshl_add_u32 v{AE}, v11, 12, v{AZ}")
    a.e(f"v_xor_b32 v{AO}, 64, v{AE}")
    a.e(f"v_add_u32 v{AO}, 32768, v{AO}")
    a.e("s_lshl_b32 s19, s17, 18")
    a.e(f"s_lshl_b32 s20, s{W}, 10")
    a.e("s_add_u32 s19, s19, s20")
    a.e(f"s_lshl_b32 s21, s{W}, 14")
    a.e(f"s_add_u32 s21, s21, {GST}")
    a.e("s_mov_b32 s22, s21")
    def dma_stage():
        for i2 in range(4):
            a.e(f"s_add_u32 m0, s22, {2*i2*1024}")
            a.e(f"s_add_u32 s28, s19, {i2*65536}")
            a.e(f"buffer_load_dwordx4 v{AE}, s[4:7], s28 offen lds")
            a.e(f"s_add_u32 m0, s22, {(2*i2+1)*1024}")
            a.e("s_nop 0")
            a.e(f"buffer_load_dwordx4 v{AO}, s[4:7], s28 offen lds")
        a.e("s_add_u32 s19, s19, 128")
        a.e("s_xor_b32 s22, s22, 8192")
    a.e(f"v_and_b32 v{GF}, 3, v2")
    a.e(f"v_lshlrev_b32 v{GF}, 2, v{GF}")
    a.e(f"v_add_u32 v{GF}, {FLG+64}, v{GF}")
    a.e(f"v_lshlrev_b32 v{GW}, 2, v2")
    a.e(f"v_add_u32 v{GW}, {FLG+256}, v{GW}")
    a.e(f"s_lshl_b32 s28, s{W}, 2")
    a.e(f"s_add_u32 s28, s28, {FLG+64}")
    a.e(f"v_writelane_b32 v{GW}, s28, 0")
    nsync = [0]
    def gsync():
        nsync[0] += 1; k = nsync[0]
        a.e(f"v_mov_b32 v{GC}, {k}")
        a.e(f"ds_write_b32 v{GW}, v{GC}")
        a.label(f"G_sync{k}")
        a.e(f"ds_read_b32 v{GV}, v{GF}")
        a.e("s_waitcnt lgkmcnt(0)")
        a.e(f"v_cmp_gt_u32 vcc, {k}, v{GV}")
        a.e("s_nop 0")
        a.e(f"s_cbranch_vccz G_synced{k}")
        a.e("s_sleep 1")
        a.e(f"s_branch G_sync{k}")
        a.label(f"G_synced{k}")
    a.e("s_mov_b32 s35, 0xffff0000")
    a.e("v_and_b32 v3, 11, v2")
    a.e("v_lshlrev_b32 v3, 2, v3")
    a.e(f"v_add_u32 v3, {FLG}, v3")
    a.label("G_hold")
    a.e("s_sleep 4")
    a.e("ds_read_b32 v4, v3")
    a.e("s_waitcnt lgkmcnt(0)")
    a.e("v_cmp_eq_u32 vcc, 0, v4")
    a.e("s_nop 0")
    a.e("s_cbranch_vccnz G_hold")
    stamp(a, 2)
    dma_stage()
    a.e("s_mul_i32 s23, s18, 393216")
    a.e(f"s_mul_i32 s29, s{W}, {32*3072}")
    a.e("s_add_u32 s23, s23, s29")
    a.e(f"s_add_u32 s23, s23, {WS_Z2F}")
    a.e(f"v_lshlrev_b32 v{AZ}, 4, v2")
    a.e("v_and_b32 v13, 31, v2")
    a.e("v_lshrrev_b32 v14, 5, v2")
    a.e("v_bfe_u32 v3, v13, 1, 3")
    a.e("v_xor_b32 v3, v3, v14")
    a.e("v_lshlrev_b32 v3, 4, v3")
    a.e(f"v_lshl_add_u32 v{AB}, v13, 7, v3")
    a.e(f"v_add_u32 v{AB}, s21, v{AB}")
    for q in range(1, 4):
        a.e(f"v_xor_b32 v{AB+q}, {q<<5}, v{AB}")
    for r in range(96): a.e(f"v_mov_b32 v{ACC+r}, 0")
    ZSC = ""
    def zload(buf):
        for i in range(3):
            a.e(f"buffer_load_dwordx4 {vr(ZF[buf]+4*i,4)}, v{AZ}, s[12:15], s23 offen offset:{i*1024}" + ZSC)
        a.e("s_add_u32 s23, s23, 3072")
    zload(0); zload(1)
    if not os.environ.get("NOZPF"):
        a.e("v_lshlrev_b32 v59, 7, v2")
        a.e("s_and_b32 s28, s17, 3")
        a.e("s_mul_i32 s28, s28, 24576")
        a.e("s_add_u32 s28, s28, s23")
        for i in range(3):
            a.e(f"buffer_load_dword v63, v59, s[12:15], s28 offen" + ZSC)
            a.e("s_add_u32 s28, s28, 8192")
        a.e("s_waitcnt vmcnt(3)")
    a.e("s_mov_b32 s29, 0")
    a.e("s_mov_b32 s32, 0")
    a.e(f"s_setprio {os.environ.get('GPRIO2', '0')}")
    if os.environ.get("G_NOLOAD"):
        zload = lambda b: None
        dma_stage = lambda: None
    a.label("G2_loop")
    step = 0
    for st in range(3):
        for q in range(4):
            zb = step % 3
            if q == 0:
                a.e("s_waitcnt vmcnt(3)")
                a.e(f"ds_read_b128 {vr(WF[0],4)}, v{AB}")
                a.e(f"ds_read_b128 {vr(WF[0]+4,4)}, v{AB} offset:4096")
                zload((step + 2) % 3)
            else:
                zload((step + 2) % 3)
                a.e(f"s_waitcnt vmcnt({6 + (8 if q <= 2 else 0)})")
            wb = q & 1
            if q < 3:
                a.e(f"ds_read_b128 {vr(WF[wb^1],4)}, v{AB+q+1}")
                a.e(f"ds_read_b128 {vr(WF[wb^1]+4,4)}, v{AB+q+1} offset:4096")
                a.e("s_waitcnt lgkmcnt(2)")
            else:
                a.e("s_waitcnt lgkmcnt(0)")
            for aa in range(2):
                for i in range(3):
                    d = ACC + 16*(3*aa + i)
                    if not os.environ.get("G_NOMFMA"): mfma32(a, d, ZF[zb]+4*i, WF[wb]+4*aa, d)
            if q == 0:
                dma_stage()
            if q == 3:
                for k in range(4):
                    a.e(f"v_xor_b32 v{AB+k}, 8192, v{AB+k}")
                a.e("s_add_u32 s29, s29, 1")
                a.e("s_cmp_ge_u32 s29, 8")
                a.e("s_cbranch_scc1 G2_done")
            step += 1
    a.e("s_branch G2_loop")
    a.label("G2_done")
    stamp(a, 3)
    a.e(f"s_setprio {os.environ.get('GPRIO', '2')}")
    a.e(f"s_lshr_b32 s19, s{W}, 1")
    a.e("s_lshl_b32 s20, s17, 1")
    a.e("s_add_u32 s20, s20, s19")
    a.e(f"s_and_b32 s22, s{W}, 1")
    a.e("s_mul_i32 s22, s22, 3")
    a.e("s_mul_i32 s23, s18, 6")
    a.e("s_add_u32 s22, s22, s23")
    a.e("s_mul_i32 s23, s20, 43")
    a.e("s_add_u32 s23, s23, s22")
    a.e("s_lshl_b32 s23, s23, 10")
    a.e(f"s_add_u32 s23, s23, {WS_Z1F}")
    a.e("s_waitcnt vmcnt(0)")
    for r in range(3):
        a.e(f"buffer_load_dwordx4 {vr(16+4*r,4)}, v{AZ}, s[12:15], s23 offen offset:{r*1024}")
    a.e("s_mul_i32 s28, s20, 75")
    a.e("s_add_u32 s28, s28, s22")
    a.e("s_add_u32 s28, s28, 32")
    a.e("s_lshl_b32 s28, s28, 10")
    a.e(f"s_add_u32 s28, s28, {WS_ACT}")
    a.e("s_lshl_b32 s20, s20, 6")
    a.e("v_lshlrev_b32 v3, 1, v13")
    srd(a, 8, 26, 27, 4096)
    a.e(f"buffer_load_ushort v28, v3, s[8:11], s20 offen")
    gsync()
    for d in range(4):
        a.e(f"s_cmp_eq_u32 s{W}, {d}")
        a.e(f"s_cbranch_scc1 G_skipw{d}")
        a.e(f"s_sub_u32 s19, s{W}, {d+1}")
        a.e("s_and_b32 s19, s19, 3")
        a.e("s_mul_i32 s19, s19, 6144")
        a.e(f"s_add_u32 s19, s19, {GST+d*18432}")
        a.e(f"v_add_u32 v4, s19, v{AZ}")
        for k in range(6):
            a.e(f"ds_write_b128 v4, {vr(ACC+24*d+4*k,4)} offset:{k*1024}")
        a.e(f"s_branch G_donew{d}")
        a.label(f"G_skipw{d}")
        for k in range(24):
            a.e(f"v_mov_b32 v{32+k}, v{ACC+24*d+k}")
        a.label(f"G_donew{d}")
    a.e(f"s_mul_i32 s19, s{W}, 18432")
    a.e(f"s_add_u32 s19, s19, {GST}")
    a.e(f"v_add_u32 v5, s19, v{AZ}")
    gsync()
    for k in range(18):
        a.e(f"ds_read_b128 {vr(ACC+4*k,4)}, v5 offset:{k*1024}")
    a.e("s_waitcnt vmcnt(0)")
    a.e("v_lshlrev_b32 v28, 16, v28")
    a.e("s_waitcnt lgkmcnt(0)")
    for k in range(24):
        a.e(f"v_add_f32 v{32+k}, v{32+k}, v28")
        a.e(f"v_add_f32 v{ACC+k}, v{ACC+k}, v{ACC+24+k}")
    for k in range(24):
        a.e(f"v_add_f32 v{32+k}, v{32+k}, v{ACC+48+k}")
        a.e(f"v_add_f32 v{ACC+k}, v{ACC+k}, v{32+k}")
    for r in range(3):
        for i in range(4):
            a.e(f"v_lshlrev_b32 v4, 16, v{16+4*r+i}")
            a.e(f"v_and_b32 v5, s35, v{16+4*r+i}")
            a.e(f"v_mul_f32 v4, v4, v{ACC+8*r+2*i}")
            a.e(f"v_mul_f32 v5, v5, v{ACC+8*r+2*i+1}")
            a.e(f"v_cvt_pk_bf16_f32 v{32+4*r+i}, v4, v5")
        a.e(f"s_add_u32 s20, s22, {r}")
        a.e("s_cmp_ge_u32 s20, 43")
        a.e("s_cbranch_scc1 G2_skip")
        a.e(f"buffer_store_dwordx4 {vr(32+4*r,4)}, v{AZ}, s[12:15], s28 offen offset:{r*1024}")
    a.label("G2_skip")
    if not os.environ.get("NOK3PF"):
        a.e("s_load_dwordx2 s[24:25], s[0:1], 16")
        a.e("s_load_dwordx2 s[26:27], s[0:1], 56")
        a.e("s_load_dwordx2 s[28:29], s[0:1], 0")
        a.e("s_lshr_b32 s19, s2, 3")
        a.e("s_lshl_b32 s19, s19, 2")
        a.e(f"s_add_u32 s19, s19, s{W}")
        a.e("v_lshlrev_b32 v4, 7, v2")
        a.e("s_lshl_b32 s20, s19, 13")
        a.e("s_waitcnt lgkmcnt(0)")
        srd(a, 4, 26, 27, 688*1024)
        a.e("buffer_load_dword v5, v4, s[4:7], s20 offen")
        srd(a, 8, 24, 25, 512*1024)
        a.e("s_xor_b32 s20, s20, 0x80000")
        a.e("buffer_load_dword v6, v4, s[8:11], s20 offen")
        srd(a, 4, 28, 29, 2*MB)
        a.e("s_and_b32 s20, s2, 7")
        a.e("s_lshl_b32 s20, s20, 18")
        a.e("s_lshl_b32 s19, s19, 11")
        a.e("s_add_u32 s20, s20, s19")
        a.e("s_mov_b64 exec, 0xffff")
        a.e("buffer_load_dword v7, v4, s[4:7], s20 offen")
        a.e("s_mov_b64 exec, -1")
    stamp_flush(a, 7 if DIAG else 4, 30, 31, 16, 1, vt=4)
    a.e("s_endpgm")
```

```python
from common import *

def gen_out(a):
    name = "out_kernel"
    kernel_head(a, name)
    a.e("s_cmp_ge_u32 s2, 256")
    a.e("s_cbranch_scc1 O_exit")
    a.e("s_load_dwordx2 s[24:25], s[0:1], 16")
    a.e("s_load_dwordx4 s[36:39], s[0:1], 56")
    a.e("s_load_dwordx2 s[30:31], s[0:1], 80")
    a.e("s_load_dwordx2 s[28:29], s[0:1], 0")
    a.e("v_lshrrev_b32 v1, 6, v0")
    a.e("v_and_b32 v2, 63, v0")
    a.e("v_readfirstlane_b32 s16, v1")
    stamp_rt(a, 0); stamp(a, 1)
    PRE = int(os.environ.get("OPRE", "3"))
    NB = PRE + 1
    ACC = 64; AF = 24; WF = [8, 16]; XR = 128
    assert AF + 8*NB <= ACC
    a.e("s_and_b32 s17, s2, 7")
    a.e("s_lshl_b32 s17, s17, 2")
    a.e("s_bfe_u32 s18, s2, 0x20003")
    a.e("s_or_b32 s17, s17, s18")
    a.e("s_lshr_b32 s18, s2, 5")
    a.e("v_bfe_u32 v3, v2, 4, 1")
    a.e("v_lshlrev_b32 v3, 2, v3")
    a.e("v_and_b32 v4, 7, v2")
    a.e("v_xor_b32 v3, v3, v4")
    a.e("v_lshlrev_b32 v3, 4, v3")
    a.e("v_lshrrev_b32 v4, 3, v2")
    a.e("v_lshl_add_u32 v3, v4, 10, v3")
    a.e("s_lshl_b32 s19, s18, 7")
    a.e("v_add_u32 v3, s19, v3")
    a.e("v_add_u32 v4, 8192-1024, v3")
    a.e("v_lshlrev_b32 v5, 4, v2")
    a.e(f"v_add_u32 v6, {75*1024}, v5")
    a.e("s_lshl_b32 s20, s16, 17")
    a.e(f"s_mul_i32 s21, s16, {11*16384}")
    a.e(f"s_mul_i32 s22, s17, {2*75*1024}")
    a.e("s_lshl_b32 s23, s16, 13")
    a.e("s_add_u32 s23, s23, s22")
    a.e(f"s_mul_i32 s26, s16, {11*1024}")
    a.e("s_add_u32 s26, s26, s22")
    a.e("s_add_u32 s26, s26, 32768")
    a.e(f"s_mul_i32 s27, s16, {19*2048}")
    a.e("s_waitcnt lgkmcnt(0)")
    srd(a, 4, 24, 25, 512*1024)
    srd(a, 8, 36, 37, 688*1024)
    a.e(f"s_add_u32 s12, s30, {WS_ACT}")
    a.e("s_addc_u32 s13, s31, 0")
    a.e("s_and_b32 s13, s13, 0xffff")
    a.e(f"s_mov_b32 s14, {ACT_BYTES}")
    a.e("s_mov_b32 s15, 0x00020000")
    UFIRST = bool(os.environ.get("UFIRST"))
    def issue(k):
        o = (k >= 11) if UFIRST else (k < 8)
        srdw = "s[4:7]" if o else "s[8:11]"
        sw = 20 if o else 21; sa = 23 if o else 26
        f = AF + 8*(k % NB)
        a.e(f"s_add_u32 m0, s27, {k*2048}")
        a.e(f"buffer_load_dwordx4 {vr(f,4)}, v5, s[12:15], s{sa} offen")
        a.e(f"buffer_load_dwordx4 v3, {srdw}, s{sw} offen lds")
        a.e(f"buffer_load_dwordx4 v4, {srdw}, s{sw} offen offset:1024 lds")
        a.e(f"buffer_load_dwordx4 {vr(f+4,4)}, v6, s[12:15], s{sa} offen")
        a.e(f"s_add_u32 s{sw}, s{sw}, 16384")
        a.e(f"s_add_u32 s{sa}, s{sa}, 1024")
    for k in range(PRE): issue(k)
    a.e("v_lshrrev_b32 v7, 5, v2")
    a.e("v_bfe_u32 v140, v2, 2, 2")
    a.e("v_lshl_add_u32 v141, v7, 2, v140")
    a.e("v_lshlrev_b32 v141, 7, v141")
    a.e("v_bfe_u32 v142, v2, 4, 1")
    a.e("v_lshlrev_b32 v142, 1, v142")
    a.e("v_bfe_u32 v143, v2, 1, 1")
    a.e("v_add_u32 v142, v142, v143")
    a.e("v_lshrrev_b32 v140, 1, v140")
    a.e("v_lshlrev_b32 v140, 2, v140")
    a.e("v_xor_b32 v142, v142, v140")
    a.e("v_lshl_add_u32 v141, v142, 4, v141")
    a.e("v_and_b32 v143, 1, v2")
    a.e("v_lshl_add_u32 v141, v143, 3, v141")
    a.e("v_add_u32 v141, s27, v141")
    a.e("v_xor_b32 v142, 64, v141")
    a.e("v_and_b32 v140, 31, v2")
    a.e("s_lshl_b32 s32, s17, 6")
    a.e("s_lshr_b32 s33, s16, 1")
    a.e("s_lshl_b32 s33, s33, 5")
    a.e("s_add_u32 s32, s32, s33")
    a.e("s_lshl_b32 s32, s32, 10")
    a.e("s_and_b32 s33, s16, 1")
    a.e("s_lshl_b32 s33, s33, 6")
    a.e("s_add_u32 s32, s32, s33")
    a.e("s_add_u32 s32, s32, s19")
    a.e("v_lshlrev_b32 v140, 10, v140")
    a.e("v_lshl_add_u32 v140, v7, 4, v140")
    srd(a, 40, 28, 29, 2*MB)
    srd(a, 44, 38, 39, 2*MB)
    stamp(a, 2)
    def wreads(k, buf):
        for b in range(2):
            for p in range(2):
                a.e(f"ds_read_b64_tr_b16 {vr(WF[buf]+4*b+2*p,2)}, v{141+b} offset:{k*2048+p*1024}")
    issued = PRE
    extra = [0]
    def wait_step(k):
        a.e(f"s_waitcnt vmcnt({4*(issued-1-k) + extra[0]})")
    wait_step(0)
    wreads(0, 0)
    for k in range(19):
        if issued < 19:
            issue(issued); issued += 1
            if issued == 19:
                for j in range(2):
                    a.e(f"buffer_load_dwordx4 {vr(XR+4*j,4)}, v140, s[40:43], s32 offen offset:{32*j}")
                extra[0] = 2
        if k + 1 < 19:
            wait_step(k + 1)
            wreads(k + 1, (k + 1) & 1)
            a.e("s_waitcnt lgkmcnt(4)")
        else:
            a.e("s_waitcnt lgkmcnt(0)")
        for aa in range(2):
            for b in range(2):
                d = ACC + 16*(2*aa + b)
                mfma32(a, d, WF[k & 1]+4*b, AF+8*(k % NB)+4*aa, d if k else "0")
    stamp(a, 3)
    a.e("v_add_u32 v6, s27, v5")
    a.e("s_lshl_b32 s21, s16, 12")
    a.e("v_add_u32 v3, s21, v5")
    a.e("s_mov_b32 s21, 0xffff0000")
    a.e("s_nop 7")
    for d in range(4):
        a.e(f"s_cmp_eq_u32 s16, {d}")
        a.e(f"s_cbranch_scc1 O_own{d}")
        for k in range(4):
            a.e(f"ds_write_b128 v6, {vr(ACC+16*d+4*k,4)} offset:{(4*d+k)*1024}")
        a.e(f"s_branch O_nx{d}")
        a.label(f"O_own{d}")
        for k in range(16):
            a.e(f"v_mov_b32 v{8+k}, v{ACC+16*d+k}")
        a.label(f"O_nx{d}")
    a.e("s_waitcnt lgkmcnt(0)")
    a.e("s_barrier")
    for j in range(1, 4):
        a.e(f"s_add_u32 s22, s16, {j}")
        a.e("s_and_b32 s22, s22, 3")
        a.e(f"s_mul_i32 s22, s22, {19*2048}")
        a.e("v_add_u32 v6, s22, v3")
        for k in range(4):
            a.e(f"ds_read_b128 {vr(ACC+16*(j-1)+4*k,4)}, v6 offset:{k*1024}")
    a.e("s_waitcnt vmcnt(0)")
    for j in range(2):
        a.e(f"v_permlane32_swap_b32 v{XR+4*j}, v{XR+4*j+2}")
        a.e(f"v_permlane32_swap_b32 v{XR+4*j+1}, v{XR+4*j+3}")
    for i in range(8):
        a.e(f"v_lshlrev_b32 v{24+2*i}, 16, v{XR+i}")
        a.e(f"v_and_b32 v{25+2*i}, s21, v{XR+i}")
    for i in range(8):
        a.e(f"v_pk_add_f32 {vr(8+2*i,2)}, {vr(8+2*i,2)}, {vr(24+2*i,2)}")
    for j in range(3):
        a.e(f"s_waitcnt lgkmcnt({8-4*j})")
        for i in range(8):
            a.e(f"v_pk_add_f32 {vr(8+2*i,2)}, {vr(8+2*i,2)}, {vr(ACC+16*j+2*i,2)}")
    for i in range(8):
        a.e(f"v_cvt_pk_bf16_f32 v{XR+i}, v{8+2*i}, v{9+2*i}")
    a.e("s_nop 1")
    for j in range(2):
        a.e(f"v_permlane32_swap_b32 v{XR+4*j}, v{XR+4*j+2}")
        a.e(f"v_permlane32_swap_b32 v{XR+4*j+1}, v{XR+4*j+3}")
    for j in range(2):
        a.e(f"buffer_store_dwordx4 {vr(XR+4*j,4)}, v140, s[44:47], s32 offen offset:{32*j}")
    stamp_flush(a, 4, 30, 31, 16, 3, vt=144)
    a.label("O_exit")
    a.e("s_endpgm")
    return name, kernel_desc(name, 152, 102 if STAMP else 56), f"; @launch kernel={name} grid=(256,1,1) block=(256,1,1) lds={4*19*2048}"
```

```python
import sys
from asmlib import *
from common import *
import importlib

HEADER = open('parallel_sum__softmax_full_mha__mixer_gmlp__prompt.s.ref').read().split("; Override launch")[0]

def build(gens, out):
    a = Asm()
    descs = []; launches = []
    for g in gens:
        k = Asm()
        name, desc, launch = g(k)
        pr = check_hazards(k.lines)
        if pr: print(f"{name}: {len(pr)} hazards")
        a.lines += k.lines
        descs.append(desc); launches.append(launch)
    txt = HEADER + "\n".join(launches) + "\n"
    txt += '.amdgcn_target "amdgcn-amd-amdhsa--gfx950"\n.text\n'
    txt += a.text()
    txt += '.section .rodata,"a"\n'
    for d in descs:
        txt += ".p2align 6\n" + d
    open(out, "w").write(txt)
    return txt

if __name__ == "__main__":
    import k1, k2, k3
    import k2m
    import k1n
    import k3n
    gens = [k1n.gen_k1, k2m.gen_k2, k3n.gen_out]
    if os.environ.get("SPLIT"): gens = [k1.gen_k1, k2.gen_attn, k3.gen_norm, k3.gen_gemm2, k3.gen_out]
    build(gens, sys.argv[1] if len(sys.argv) > 1 else "test_k1.s")
```

```python
from asmlib import *
import struct
MB = 1 << 20
WS_QF  = 0
WS_KV  = 2*MB
WS_Z1F = 6*MB
WS_Z2R = 9*MB
WS_Z2F = 12*MB
WS_ACT = 16*MB
ACT_BYTES = 64*75*1024
WS_CNT = 24*MB
WS_BYTES = 32*MB
def f32(x):
    return "0x%08x" % struct.unpack("<I", struct.pack("<f", x))[0]
LOG2E = 1.4426950408889634
QSCALE = 0.25 * LOG2E

def kernel_head(a, name):
    a.e(f".globl {name}")
    a.e(".p2align 8")
    a.e(f".type {name},@function")
    a.label(name)

def kernel_desc(name, vgpr, sgpr, accum=None):
    accum = accum if accum is not None else ((vgpr + 3) // 4) * 4
    return f""".amdhsa_kernel {name}
  .amdhsa_next_free_vgpr {vgpr}
  .amdhsa_next_free_sgpr {sgpr}
  .amdhsa_accum_offset {accum}
  .amdhsa_group_segment_fixed_size 0
  .amdhsa_kernarg_size 88
  .amdhsa_user_sgpr_count 2
  .amdhsa_user_sgpr_kernarg_segment_ptr 1
  .amdhsa_system_sgpr_workgroup_id_x 1
.end_amdhsa_kernel
"""

def srd(a, d, lo, hi, nrec):
    a.e(f"s_mov_b32 s{d}, s{lo}")
    a.e(f"s_and_b32 s{d+1}, s{hi}, 0xffff")
    a.e(f"s_mov_b32 s{d+2}, {nrec}")
    a.e(f"s_mov_b32 s{d+3}, 0x00020000")

def mfma32(a, d, A, B, C):
    a.e(f"v_mfma_f32_32x32x16_bf16 {vr(d,16)}, {vr(A,4)}, {vr(B,4)}, {vr(C,16) if isinstance(C,int) else C}")

def bf16_round(a, v, tmp=None):
    a.e(f"v_cvt_pk_bf16_f32 v{v}, v{v}, v{v}")
    a.e(f"v_and_b32 v{v}, 0xffff0000, v{v}")

def ln_stats(a, s1, s2, n, mu, r, t):
    a.e(f"v_mul_f32 v{mu}, {f32(1.0/n)}, v{s1}")
    a.e(f"v_mul_f32 v{t}, {f32(1.0/n)}, v{s2}")
    a.e(f"v_fma_f32 v{t}, -v{mu}, v{mu}, v{t}")
    a.e(f"v_max_f32 v{t}, 0, v{t}")
    bf16_round(a, t)
    a.e(f"v_add_f32 v{t}, {f32(1e-5)}, v{t}")
    bf16_round(a, t)
    a.e(f"v_sqrt_f32 v{t}, v{t}")
    a.e("s_nop 0")
    bf16_round(a, t)
    a.e(f"v_rcp_f32 v{r}, v{t}")
    bf16_round(a, mu)

import os
STAMP = bool(int(os.environ.get("STAMP", "0")))
WS_DBG = 28*MB
STAMP_S = 64
def stamp(a, i):
    if STAMP:
        a.e(f"s_memtime s[{STAMP_S+2*i}:{STAMP_S+2*i+1}]")
        a.e("s_waitcnt lgkmcnt(0)")
def stamp_rt(a, i):
    if STAMP:
        a.e(f"s_memrealtime s[{STAMP_S+2*i}:{STAMP_S+2*i+1}]")
        a.e("s_waitcnt lgkmcnt(0)")
def stamp_flush(a, n, ws_lo, ws_hi, wave_s, kidx, vt=240, srd_s=96):
    if not STAMP: return
    a.e("s_waitcnt vmcnt(0) lgkmcnt(0)")
    a.e(f"s_memtime s[{STAMP_S+2*n}:{STAMP_S+2*n+1}]")
    a.e(f"s_memrealtime s[{STAMP_S+2*n+2}:{STAMP_S+2*n+3}]")
    a.e(f"s_load_dwordx2 s[{srd_s}:{srd_s+1}], s[0:1], 80")
    a.e("s_waitcnt lgkmcnt(0)")
    a.e(f"s_and_b32 s{srd_s+1}, s{srd_s+1}, 0xffff")
    a.e(f"s_mov_b32 s{srd_s+2}, {WS_BYTES}")
    a.e(f"s_mov_b32 s{srd_s+3}, 0x00020000")
    a.e(f"s_lshl_b32 s{STAMP_S-1}, s2, 4")
    a.e(f"s_add_u32 s{STAMP_S-1}, s{STAMP_S-1}, s{wave_s}")
    a.e(f"s_lshl_b32 s{STAMP_S-1}, s{STAMP_S-1}, 7")
    a.e(f"s_add_u32 s{STAMP_S-1}, s{STAMP_S-1}, {WS_DBG + kidx*(MB//2)}")
    a.e(f"v_mov_b32 v{vt}, 0")
    a.e("s_mov_b64 exec, 1")
    for i in range(n + 2):
        a.e(f"v_mov_b32 v{vt+2}, s{STAMP_S+2*i}")
        a.e(f"v_mov_b32 v{vt+3}, s{STAMP_S+2*i+1}")
        a.e(f"buffer_store_dwordx2 v[{vt+2}:{vt+3}], v{vt}, s[{srd_s}:{srd_s+3}], s{STAMP_S-1} offen offset:{8*i}")
        a.e("s_waitcnt vmcnt(0)")

DIAG = STAMP and bool(os.environ.get("DIAG"))
def tic(a):
    a.e("s_memtime s[56:57]"); a.e("s_waitcnt lgkmcnt(0)")
def toc(a, acc):
    a.e("s_memtime s[58:59]"); a.e("s_waitcnt lgkmcnt(0)")
    a.e("s_sub_u32 s58, s58, s56"); a.e(f"s_add_u32 s{acc}, s{acc}, s58")

HT = bool(os.environ.get("HT"))
def ht_mark(a, slot, cond_wave_s, vt, st=84):
    if not HT: return
    lab = f"HT_{slot}_{len(a.lines)}"
    a.e(f"s_or_b32 s{st}, s2, s{cond_wave_s}")
    a.e(f"s_cbranch_scc1 {lab}")
    a.e(f"s_load_dwordx2 s[{st+4}:{st+5}], s[0:1], 80")
    a.e(f"s_memrealtime s[{st+2}:{st+3}]")
    a.e("s_waitcnt lgkmcnt(0)")
    a.e(f"s_and_b32 s{st+5}, s{st+5}, 0xffff")
    a.e(f"s_mov_b32 s{st+6}, {WS_BYTES}")
    a.e(f"s_mov_b32 s{st+7}, 0x00020000")
    a.e(f"v_mov_b32 v{vt}, {WS_DBG + slot*4}")
    a.e(f"v_mov_b32 v{vt+1}, s{st+2}")
    a.e(f"buffer_store_dword v{vt+1}, v{vt}, s[{st+4}:{st+7}], 0 offen")
    a.e("s_waitcnt vmcnt(0)")
    a.label(lab)
def ht_final(a, cond_wave_s, vt, st=84):
    if not HT: return
    lab = f"HT_fin_{len(a.lines)}"
    a.e(f"s_or_b32 s{st}, s2, s{cond_wave_s}")
    a.e(f"s_cbranch_scc1 {lab}")
    a.e(f"s_load_dwordx4 s[{st+8}:{st+11}], s[0:1], 72")
    a.e("s_waitcnt lgkmcnt(0)")
    a.e(f"s_mov_b32 s{st+4}, s{st+10}")
    a.e(f"s_and_b32 s{st+5}, s{st+11}, 0xffff")
    a.e(f"s_mov_b32 s{st+6}, {WS_BYTES}")
    a.e(f"s_mov_b32 s{st+7}, 0x00020000")
    a.e(f"v_and_b32 v{vt}, 15, v2")
    a.e(f"v_lshlrev_b32 v{vt}, 2, v{vt}")
    a.e(f"v_add_u32 v{vt+2}, {WS_DBG}, v{vt}")
    a.e(f"buffer_load_dword v{vt+1}, v{vt+2}, s[{st+4}:{st+7}], 0 offen sc1")
    a.e(f"s_mov_b32 s{st+4}, s{st+8}")
    a.e(f"s_and_b32 s{st+5}, s{st+9}, 0xffff")
    a.e("s_waitcnt vmcnt(0)")
    a.e(f"s_mov_b32 s{st+6}, 256")
    a.e(f"buffer_store_dword v{vt+1}, v{vt}, s[{st+4}:{st+7}], 0 offen")
    a.e("s_waitcnt vmcnt(0)")
    a.label(lab)
```

```python
from common import *

STAGE = 40960
WS_ST = WS_Z2R
WS_RS = WS_Z2R + MB
RST = 80

def gen_k1(a):
    name = "gemm1_kernel"
    kernel_head(a, name)
    a.e("s_cmp_ge_u32 s2, 256")
    a.e("s_cbranch_scc1 K1_exit")
    a.e("s_load_dwordx4 s[24:27], s[0:1], 0")
    a.e("s_load_dwordx2 s[28:29], s[0:1], 32")
    a.e("s_load_dwordx4 s[48:51], s[0:1], 72")
    a.e("v_lshrrev_b32 v1, 6, v0")
    a.e("v_and_b32 v2, 63, v0")
    a.e("v_readfirstlane_b32 s16, v1")
    MAP = int(os.environ.get("MAP", "1"))
    if MAP == 0:
        a.e("s_and_b32 s17, s2, 15")
        a.e("s_lshr_b32 s18, s2, 4")
    elif MAP == 1:
        a.e("s_bfe_u32 s17, s2, 0x20001")
        a.e("s_bfe_u32 s18, s2, 0x20003")
        a.e("s_lshl_b32 s18, s18, 2")
        a.e("s_or_b32 s17, s17, s18")
        a.e("s_and_b32 s18, s2, 1")
        a.e("s_lshl_b32 s18, s18, 3")
        a.e("s_lshr_b32 s20, s2, 5")
        a.e("s_or_b32 s18, s18, s20")
    elif MAP == 2:
        a.e("s_bfe_u32 s17, s2, 0x40003")
        a.e("s_and_b32 s18, s2, 7")
        a.e("s_lshl_b32 s18, s18, 1")
        a.e("s_lshr_b32 s20, s2, 7")
        a.e("s_or_b32 s18, s18, s20")
    a.e("s_cmp_lt_u32 s17, 11")
    a.e("s_cselect_b32 s19, 1, 0")
    stamp_rt(a, 0); stamp(a, 1)
    ht_mark(a, 0, 16, 240)
    a.e("s_cmp_ge_u32 s16, 4")
    a.e("s_cbranch_scc0 K1_compute")
    a.e("s_sub_u32 s16, s16, 4")
    a.e("s_cmp_eq_u32 s19, 1")
    a.e("s_mov_b32 s20, 3072")
    a.e("s_cmov_b32 s20, 2752")
    a.e("s_lshl_b32 s21, s17, 7")
    a.e("s_add_u32 s22, s21, 1376")
    a.e(f"s_add_u32 s23, s21, {2048-11*128}")
    a.e("s_min_u32 s32, s17, 13")
    a.e("s_lshl_b32 s32, s32, 7")
    a.e(f"s_add_u32 s32, s32, {2048-6*128}")
    a.e("s_cmp_eq_u32 s19, 1")
    a.e("s_cselect_b32 s22, s22, s23")
    a.e("s_cselect_b32 s23, s21, s32")
    a.e("v_lshrrev_b32 v3, 4, v2")
    a.e("s_and_b32 s33, s16, 1")
    a.e("s_lshl_b32 s33, s33, 2")
    a.e("v_add_u32 v3, s33, v3")
    a.e("v_and_b32 v8, 7, v2")
    a.e("v_xor_b32 v3, v3, v8")
    a.e("v_lshlrev_b32 v3, 4, v3")
    a.e("v_lshrrev_b32 v9, 3, v2")
    a.e("s_lshl_b32 s34, s18, 7")
    a.e("s_lshl_b32 s35, s16, 3")
    a.e("s_add_u32 s34, s34, s35")
    a.e("v_add_u32 v4, s34, v9")
    a.e("v_lshlrev_b32 v4, 10, v4")
    a.e("v_add_u32 v4, v4, v3")
    for u in range(1, 4):
        a.e(f"v_add_u32 v{4+u}, {u*32768}, v4")
    a.e("v_bfe_u32 v3, v2, 4, 1")
    a.e("v_lshlrev_b32 v3, 2, v3")
    a.e("v_xor_b32 v3, v3, v8")
    a.e("v_lshlrev_b32 v3, 4, v3")
    a.e("v_add_u32 v16, s35, v9")
    a.e("v_mul_u32_u24 v10, 3072, v16")
    a.e("v_add3_u32 v10, v10, v3, s21")
    a.e("v_add_u32 v11, 32*3072, v10")
    a.e("v_mul_lo_u32 v16, v16, s20")
    a.e("v_add_u32 v16, v16, v3")
    a.e("v_add_u32 v12, s22, v16")
    a.e("v_add_u32 v14, s23, v16")
    a.e("s_lshl_b32 s36, s20, 5")
    a.e("v_add_u32 v13, s36, v12")
    a.e("v_add_u32 v15, s36, v14")
    a.e("s_lshl_b32 s37, s20, 6")
    ROT = int(os.environ.get("ROT", "3"))
    if ROT == 0: a.e("s_mov_b32 s47, 0")
    elif ROT == 3:
        a.e("s_lshr_b32 s47, s17, 2")
        a.e("s_lshl_b32 s47, s47, 1")
        a.e("s_add_u32 s47, s47, s18")
        a.e("s_and_b32 s47, s47, 7")
    elif ROT == 4:
        a.e("s_lshr_b32 s47, s17, 3")
        a.e("s_lshl_b32 s47, s47, 2")
        a.e("s_add_u32 s47, s47, s18")
        a.e("s_and_b32 s47, s47, 7")
    else:
        a.e("s_add_u32 s47, s18, s17")
        a.e("s_and_b32 s47, s47, 7")
    a.e("s_lshl_b32 s38, s47, 7")
    a.e(f"s_mul_i32 s39, s47, {64*3072}")
    a.e("s_mul_i32 s43, s47, s37")
    a.e("s_lshl_b32 s40, s16, 10")
    a.e("s_mov_b32 s41, 0")
    a.e("s_waitcnt lgkmcnt(0)")
    if DIAG:
        stamp(a, 2)
        for r in range(74, 78): a.e(f"s_mov_b32 s{r}, 0")
    srd(a, 4, 24, 25, 2*MB)
    srd(a, 8, 26, 27, 512*3072)
    a.e("s_cmp_eq_u32 s19, 1")
    a.e("s_cselect_b32 s12, s28, s26")
    a.e("s_cselect_b32 s13, s29, s27")
    a.e("s_and_b32 s13, s13, 0xffff")
    a.e("s_lshl_b32 s14, s20, 9")
    a.e("s_mov_b32 s15, 0x00020000")
    def dma_list():
        L = []
        for u in range(4):
            L.append((u*4096, f"buffer_load_dwordx4 v{4+u}, s[4:7], s38 offen lds"))
            if u < 3:
                sr_, so = ("s[8:11]", "s39") if u == 0 else ("s[12:15]", "s43")
                L.append((16384 + (2*u)*4096, f"buffer_load_dwordx4 v{10+2*u}, {sr_}, {so} offen lds"))
                L.append((16384 + (2*u+1)*4096, f"buffer_load_dwordx4 v{10+2*u+1}, {sr_}, {so} offen lds"))
        return L
    def adv_issue():
        a.e("s_add_u32 s38, s38, 128")
        a.e(f"s_add_u32 s39, s39, {64*3072}")
        a.e("s_add_u32 s43, s43, s37")
        a.e("s_cmp_eq_u32 s38, 1024")
        a.e("s_cmov_b32 s38, 0")
        a.e("s_cmov_b32 s39, 0")
        a.e("s_cmov_b32 s43, 0")
        a.e(f"s_add_u32 s40, s40, {STAGE}")
        a.e(f"s_cmp_ge_u32 s40, {4*STAGE}")
        a.e(f"s_cselect_b32 s42, {4*STAGE}, 0")
        a.e("s_sub_u32 s40, s40, s42")
    dl = dma_list()
    def issue(lst):
        for off, ins in lst:
            a.e(f"s_add_u32 m0, s40, {off}")
            a.e("s_nop 0")
            a.e(ins)
    PB = int(os.environ.get("PB", "5"))
    issue(dl); adv_issue()
    a.e("s_mov_b32 s41, 0")
    a.label("K1_steady")
    issue(dl[:PB])
    if DIAG: tic(a)
    a.e(f"s_waitcnt vmcnt({PB})")
    if DIAG: toc(a, 74); tic(a)
    a.e("s_barrier")
    if DIAG: toc(a, 76)
    issue(dl[PB:]); adv_issue()
    a.e("s_add_u32 s41, s41, 1")
    a.e("s_cmp_lt_u32 s41, 7")
    a.e("s_cbranch_scc1 K1_steady")
    if DIAG: stamp(a, 3); stamp(a, 4)
    srd(a, 24, 48, 49, 256)
    srd(a, 28, 50, 51, WS_BYTES)
    a.e("s_lshl_b32 s46, s18, 4")
    a.e("v_mov_b32 v24, 0")
    a.e("v_and_b32 v17, 31, v2")
    a.e("v_lshrrev_b32 v18, 5, v2")
    a.e("s_lshl_b32 s47, s16, 5")
    a.e("v_add_u32 v17, s47, v17")
    a.e("v_lshlrev_b32 v17, 2, v17")
    a.e("v_lshlrev_b32 v6, 1, v17")
    a.e("v_lshl_add_u32 v6, v18, 10, v6")
    a.e(f"s_mul_i32 s42, s18, {22*1024}")
    a.e(f"s_add_u32 s42, s42, {WS_ST}")
    a.e("s_mov_b32 s44, 0x01010101")
    a.e("s_waitcnt vmcnt(0)")
    a.e("s_barrier")
    if DIAG:
        a.e("s_add_u32 s16, s16, 4")
        stamp_flush(a, 7, 50, 51, 16, 0, vt=52)
        a.e("s_sub_u32 s16, s16, 4")
        a.e("s_mov_b64 exec, -1")
    a.e("s_cmp_eq_u32 s19, 1")
    a.e("s_cbranch_scc0 K1_exit")
    a.e("v_mov_b32 v25, 4096")
    a.e("s_cmp_eq_u32 s16, 0")
    a.e("s_cbranch_scc0 K1_nl0")
    a.e("ds_write_b32 v25, v24")
    a.e("s_mov_b64 exec, 1")
    a.e("buffer_load_dwordx4 v[20:23], v24, s[24:27], s46 offen sc1")
    a.e("s_mov_b64 exec, -1")
    a.e("s_waitcnt lgkmcnt(0)")
    a.label("K1_nl0")
    a.e("s_barrier")
    a.e("s_barrier")
    a.e("s_barrier")
    a.e("s_cbranch_scc0 K1_wgo")
    a.e("s_mov_b64 exec, 1")
    a.label("K1_rdy")
    a.e("s_waitcnt vmcnt(0)")
    a.e("v_or_b32 v22, 0x01000000, v22")
    a.e("v_and_b32 v20, v20, v21")
    a.e("v_and_b32 v20, v20, v22")
    a.e("v_cmp_ne_u32 vcc, s44, v20")
    a.e("s_nop 0")
    a.e("s_cbranch_vccz K1_rdy1")
    a.e("s_sleep 16")
    a.e("buffer_load_dwordx4 v[20:23], v24, s[24:27], s46 offen sc1")
    a.e("s_branch K1_rdy")
    a.label("K1_rdy1")
    a.e("ds_write_b32 v25, v25")
    a.e("s_mov_b64 exec, -1")
    a.e("s_branch K1_poll")
    a.label("K1_wgo")
    a.e("s_sleep 2")
    a.e("ds_read_b32 v20, v25")
    a.e("s_waitcnt lgkmcnt(0)")
    a.e("v_cmp_eq_u32 vcc, 0, v20")
    a.e("s_nop 0")
    a.e("s_cbranch_vccnz K1_wgo")
    a.label("K1_poll")
    a.e(f"s_sleep {os.environ.get('K1SLEEP', '8')}")
    a.e("s_mov_b32 s47, s42")
    for i in range(11):
        a.e(f"buffer_load_dwordx2 {vr(20+2*i,2)}, v6, s[28:31], s47 offen offset:{(i&1)*2048} sc1")
        if i & 1: a.e("s_add_u32 s47, s47, 4096")
    a.e("s_waitcnt vmcnt(0)")
    a.e("v_and_b32 v8, v21, v23")
    for i in range(2, 11):
        a.e(f"v_and_b32 v8, v8, v{21+2*i}")
    a.e("v_cmp_le_i32 vcc, 0, v8")
    a.e("s_nop 0")
    a.e("s_cbranch_vccnz K1_poll")
    for i in range(1, 11):
        a.e(f"v_add_f32 v20, v20, v{20+2*i}")
        a.e(f"v_add_f32 v21, v21, v{21+2*i}")
    a.e("v_mov_b32 v22, v20")
    a.e("v_mov_b32 v23, v21")
    a.e("s_nop 1")
    a.e("v_permlane32_swap_b32 v20, v22")
    a.e("v_permlane32_swap_b32 v21, v23")
    a.e("v_add_f32 v20, v20, v22")
    a.e("v_sub_f32 v21, 0, v21")
    a.e("v_sub_f32 v21, v21, v23")
    ln_stats(a, 20, 21, 688, 24, 25, 26)
    a.e("v_mul_f32 v24, v24, v25")
    a.e("ds_write_b32 v17, v24 offset:1024")
    a.e("ds_write_b32 v17, v25 offset:1536")
    a.e("s_waitcnt lgkmcnt(0)")
    a.e("s_barrier")
    a.label("K1_exit")
    a.e("s_endpgm")

    a.label("K1_compute")
    X = [16, 24]; W = [32, 44]; ACC = 64
    AX = 160; AX1 = 164; AWE = 12; AWO = 14; SEL = 56; CS = 244; SA = 8; UT = 168
    a.e("s_lshr_b32 s20, s16, 1")
    a.e("s_and_b32 s21, s16, 1")
    a.e("v_and_b32 v3, 31, v2")
    a.e("v_lshrrev_b32 v4, 5, v2")
    a.e("v_bfe_u32 v5, v3, 1, 3")
    a.e("v_xor_b32 v5, v5, v4")
    a.e("v_lshlrev_b32 v5, 4, v5")
    a.e("s_lshl_b32 s22, s20, 5")
    a.e("v_xor_b32 v5, s22, v5")
    a.e("s_lshl_b32 s22, s16, 5")
    a.e("v_add_u32 v6, s22, v3")
    a.e(f"v_lshl_add_u32 v{AX}, v6, 7, v5")
    for q in range(1, 4):
        a.e(f"v_xor_b32 v{AX+q}, {q<<5}, v{AX}")
    for q in range(4):
        a.e(f"v_xor_b32 v{AX1+q}, 4096, v{AX+q}")
    a.e("v_bfe_u32 v5, v2, 2, 2")
    a.e("v_lshl_add_u32 v6, v4, 3, v5")
    a.e("v_lshlrev_b32 v6, 7, v6")
    a.e("v_bfe_u32 v7, v2, 4, 1")
    a.e("v_lshlrev_b32 v7, 1, v7")
    a.e("v_bfe_u32 v15, v2, 1, 1")
    a.e("v_add_u32 v7, v7, v15")
    a.e("s_lshl_b32 s23, s21, 2")
    a.e("v_add_u32 v7, s23, v7")
    a.e("v_lshrrev_b32 v5, 1, v5")
    a.e("v_lshlrev_b32 v5, 2, v5")
    a.e("v_xor_b32 v7, v7, v5")
    a.e("v_lshl_add_u32 v6, v7, 4, v6")
    a.e("v_and_b32 v15, 1, v2")
    a.e("v_lshl_add_u32 v6, v15, 3, v6")
    a.e("v_add_u32 v6, 16384, v6")
    a.e("s_lshl_b32 s23, s20, 11")
    a.e(f"v_add_u32 v{AWE}, s23, v6")
    a.e(f"v_subrev_u32 v{AWO}, s23, v6")
    a.e("v_lshrrev_b32 v5, 1, v2")
    a.e("v_xor_b32 v5, v5, v2")
    a.e("v_bfe_u32 v5, v5, 3, 1")
    a.e("v_add_u32 v5, -1, v5")
    a.e(f"v_and_b32 v{SEL}, 0x3f803f80, v5")
    for r in range(1, 4):
        a.e(f"v_mov_b32 v{SEL+r}, v{SEL}")
    for r in range(12):
        a.e(f"v_mov_b32 v{CS+r}, 0")
    for r in range(96):
        a.e(f"v_mov_b32 v{ACC+r}, 0")
    if DIAG: a.e("s_mov_b32 s74, 0"); a.e("s_mov_b32 s75, 0")
    a.e("s_mov_b32 s32, 0")
    a.e("s_mov_b32 s33, 0")
    a.e(f"s_mov_b32 s35, {STAGE}")
    a.e("s_waitcnt lgkmcnt(0)")
    srd(a, 12, 50, 51, WS_BYTES)
    srd(a, 8, 48, 49, 256)
    a.e("s_lshl_b32 s44, s16, 5")
    a.e("v_xor_b32 v60, s44, v2")
    a.e("v_lshlrev_b32 v60, 3, v60")
    a.e(f"s_mul_i32 s44, s18, {22*1024}")
    a.e("s_lshl_b32 s45, s17, 11")
    a.e("s_lshl_b32 s46, s21, 10")
    a.e("s_add_u32 s44, s44, s45")
    a.e("s_add_u32 s44, s44, s46")
    a.e(f"s_add_u32 s44, s44, {WS_ST}")
    a.e("s_cmp_eq_u32 s19, 1")
    a.e("s_cbranch_scc0 K1_nozero")
    a.e(f"buffer_store_dwordx2 {vr(ACC,2)}, v60, s[12:15], s44 offen sc1")
    a.label("K1_nozero")
    a.e("s_mov_b32 s45, 0xffff0000")
    for r in range(4): a.e(f"v_mov_b32 v{SA+r}, 0")

    def reads(q, buf):
        r = [f"ds_read_b128 {vr(X[buf],4)}, v{AX+q}"]
        aw = AWO if (q & 1) else AWE
        for s in range(3):
            for p in range(2):
                r.append(f"ds_read_b64_tr_b16 {vr(W[buf]+4*s+2*p,2)}, v{aw} offset:{s*8192+q*2048+p*512}")
        r.append(f"ds_read_b128 {vr(X[buf]+4,4)}, v{AX1+q}")
        return r
    a.e("s_barrier")
    stamp(a, 2)
    ht_mark(a, 1, 16, 240)
    for l in reads(0, 0): a.e(l)
    a.e("s_lshl_b32 s46, s18, 4")
    a.e("s_add_u32 s46, s46, s17")
    a.e("v_mov_b32 v61, 1")
    a.e("v_mov_b32 v62, 0")
    a.e("s_cmp_eq_u32 s19, 1")
    a.e("s_cbranch_scc1 K1_loopZ")

    def mainloop(tag, mixed):
        a.label(f"K1_loop{tag}")
        for q in range(4):
            buf = q & 1
            pre = []
            if q == 3:
                addv = [f"v_add_u32 v{r}, s34, v{r}" for r in (AX, AWE, AX1, AX+1, AX+2, AX+3, AX1+1, AX1+2, AX1+3, AWO)]
                rd = reads(0, 0)
            else:
                addv = []
                rd = reads(q + 1, buf ^ 1)
            mf = []
            for aa in range(2):
                for s in range(3):
                    d = ACC + 16*(3*aa + s)
                    if s >= 1 and not mixed:
                        mf.append((d, X[buf]+4*aa, W[buf]+4*s))
                    else:
                        mf.append((d, W[buf]+4*s, X[buf]+4*aa))
            st = []
            for i in range(4):
                r = X[buf] + i; u = UT + 2*(i & 1)
                st += [f"v_lshlrev_b32 v{u}, 16, v{r}", f"v_and_b32 v{u+1}, s45, v{r}", f"v_add_f32 v{SA}, v{SA}, v{u}", f"v_add_f32 v{SA+1}, v{SA+1}, v{u+1}",
                       f"v_fmac_f32 v{SA+2}, v{u}, v{u}", f"v_fmac_f32 v{SA+3}, v{u+1}, v{u+1}"]
            if os.environ.get("NOST"): st = []
            rest = addv[3:] + st
            n = len(rest)
            cut = [0, 0, n*1//12, n*4//12, n*7//12, n*10//12, n]
            fill = [rd[:4], rd[4:], [], [], [], []]
            for k in range(6): fill[k] = fill[k] + rest[cut[k]:cut[k+1]]
            if q == 2:
                fill[4] = fill[4] + [f"s_add_u32 s33, s33, {STAGE}", f"s_cmp_ge_u32 s33, {4*STAGE}"]
                fill[5] = fill[5] + [f"s_cselect_b32 s34, {(-3*STAGE) & 0xffffffff}, s35", "s_cselect_b32 s33, 0, s33"] + [f"v_add_u32 v{r}, s34, v{r}" for r in (AX, AWE, AX1)]
            a.e("s_waitcnt lgkmcnt(3)")
            for k in range(6):
                if k == 2: a.e("s_waitcnt lgkmcnt(8)")
                mfma32(a, mf[k][0], mf[k][1], mf[k][2], mf[k][0])
                if q == 3 and k == 0:
                    if DIAG: a.e("s_waitcnt lgkmcnt(0)"); tic(a)
                    if mixed:
                        a.e("s_cmp_eq_u32 s32, 0")
                        a.e("s_cbranch_scc1 K1_first")
                    a.e("s_barrier")
                    if mixed: a.label("K1_firstback")
                    if DIAG: toc(a, 74)
                for l in fill[k]: a.e(l)
                if q % 2 == 0 and k >= 3:
                    sg = k - 3
                    a.e(f"v_mfma_f32_16x16x32_bf16 {vr(CS+4*sg,4)}, {vr(SEL,4)}, {vr(W[buf]+4*sg,4)}, {vr(CS+4*sg,4)}")
        a.e("s_add_u32 s32, s32, 1")
        a.e("s_cmp_lt_u32 s32, 8")
        a.e(f"s_cbranch_scc1 K1_loop{tag}")

    T = 168; CSB = 184; MU = [200, 202]; RR = [204, 206]; CSL = 208; CSR = 212; RQ = [228, 230]; P = 232
    def exchange():
        a.e("s_waitcnt lgkmcnt(0)")
        stamp(a, 3)
        a.e("v_and_b32 v5, 15, v2")
        a.e("v_lshl_add_u32 v5, v4, 4, v5")
        a.e("s_mul_i32 s22, s20, 768")
        a.e("s_lshl_b32 s23, s21, 7")
        a.e("s_add_u32 s22, s22, s23")
        a.e("s_add_u32 s22, s22, 2048")
        a.e("v_lshl_add_u32 v5, v5, 2, s22")
        a.e("s_lshl_b32 s22, s16, 7")
        a.e("v_lshl_add_u32 v6, v3, 2, s22")
        a.e("v_xor_b32 v7, 128, v6")
        for s in range(3):
            a.e(f"ds_write_b32 v5, v{CS+4*s} offset:{s*256}")
        a.e(f"v_add_f32 v{SA}, v{SA}, v{SA+1}")
        a.e(f"v_add_f32 v{SA+2}, v{SA+2}, v{SA+3}")
        a.e(f"v_mov_b32 v{SA+1}, v{SA}")
        a.e(f"v_mov_b32 v{SA+3}, v{SA+2}")
        a.e("s_nop 1")
        a.e(f"v_permlane32_swap_b32 v{SA}, v{SA+1}")
        a.e(f"v_permlane32_swap_b32 v{SA+2}, v{SA+3}")
        a.e(f"v_add_f32 v{SA}, v{SA}, v{SA+1}")
        a.e(f"v_add_f32 v{SA+2}, v{SA+2}, v{SA+3}")
        ln_stats(a, SA, SA+2, 512, MU[0], RR[0], SA+1)
        a.e(f"ds_write_b32 v6, v{MU[0]}")
        a.e(f"ds_write_b32 v6, v{RR[0]} offset:512")
        a.e("s_add_u32 s23, s23, 2048")
        a.e("v_lshl_add_u32 v10, v4, 4, s23")
        a.e("v_lshl_add_u32 v9, v3, 2, s23")
        a.e("s_lshl_b32 s22, s18, 2")
        a.e("s_add_u32 s22, s22, s16")
        a.e("s_xor_b32 s23, s22, 1")
        a.e("s_and_b32 s34, s17, 7")
        a.e("s_lshl_b32 s34, s34, 8")
        a.e("s_lshl_b32 s35, s21, 7")
        a.e("s_add_u32 s34, s34, s35")
        a.e("s_add_u32 s36, s22, s34")
        a.e("s_add_u32 s37, s23, s34")
        a.e("s_cmp_ge_u32 s17, 8")
        a.e("s_cselect_b32 s38, 11, 10")
        a.e(f"s_cselect_b32 s39, {WS_KV}, 0")
        a.e(f"s_mov_b32 s40, {f32(QSCALE)}")
        a.e("s_cmov_b32 s40, 1.0")
        a.e("s_lshl_b32 s36, s36, s38")
        a.e("s_lshl_b32 s37, s37, s38")
        a.e("s_add_u32 s36, s36, s39")
        a.e("s_add_u32 s37, s37, s39")
        a.e("s_lshl_b32 s41, 64, s38")
        a.e("v_lshlrev_b32 v11, 4, v2")
        a.e("v_add_u32 v15, s41, v11")
        a.e("s_waitcnt lgkmcnt(0)")
        a.e("s_barrier")
        stamp(a, 4)
        a.e(f"ds_read_b32 v{MU[1]}, v7")
        a.e(f"ds_read_b32 v{RR[1]}, v7 offset:512")
    def load_csr(s, dst):
        for i in range(4):
            a.e(f"ds_read_b128 {vr(dst+4*i,4)}, v10 offset:{s*256+i*32}")
            a.e(f"ds_read_b128 {vr(CSB+4*i,4)}, v10 offset:{768+s*256+i*32}")
    def add_csr(dst):
        for i in range(8):
            a.e(f"v_pk_add_f32 {vr(dst+2*i,2)}, {vr(dst+2*i,2)}, {vr(CSB+2*i,2)}")
    def fold_T(d, sl, csr, rr):
        for i in range(8):
            a.e(f"v_pk_fma_f32 {vr(d+2*i,2)}, {vr(csr+2*i,2)}, {vr(MU[sl],2)}, {vr(d+2*i,2)} op_sel_hi:[1,0,1] neg_lo:[0,1,0] neg_hi:[0,1,0]")
        for i in range(8):
            a.e(f"v_pk_mul_f32 {vr(d+2*i,2)}, {vr(d+2*i,2)}, {vr(rr,2)} op_sel_hi:[1,0]")
    def pack(d, half, tmp):
        for i in range(4):
            a.e(f"v_cvt_pk_bf16_f32 v{tmp+i}, v{d+8*half+2*i}, v{d+8*half+2*i+1}")
    def store(tmp, vaddr, soff, off=0):
        a.e(f"buffer_store_dwordx4 {vr(tmp,4)}, v{vaddr}, s[12:15], {soff} offen" + (f" offset:{off}" if off else ""))
    def qk_part(csr):
        for sl in range(2):
            a.e(f"v_mul_f32 v{RQ[sl]}, s40, v{RR[sl]}")
        for sl in range(2):
            d = ACC + 16*(3*sl + 0)
            fold_T(d, sl, csr, RQ[sl])
            pack(d, 0, P); store(P, 11, f"s{36+sl}")
            pack(d, 1, P+4); store(P+4, 15, f"s{36+sl}")

    mainloop("Q", False)
    exchange()
    load_csr(0, CSR)
    for s in range(2):
        a.e(f"ds_read_b32 v{CSL+2*s}, v9 offset:{256*(s+1)}")
        a.e(f"ds_read_b32 v{CSL+2*s+1}, v9 offset:{768+256*(s+1)}")
    a.e("s_lshl_b32 s34, s16, 7")
    a.e("v_lshl_add_u32 v8, v4, 4, s34")
    a.e("v_xor_b32 v19, 128, v8")
    a.e("s_sub_u32 s34, s17, 11")
    a.e("s_lshl_b32 s34, s34, 8")
    a.e("s_add_u32 s34, s34, s35")
    a.e("s_add_u32 s42, s22, s34")
    a.e("s_add_u32 s43, s23, s34")
    a.e("s_lshl_b32 s42, s42, 11")
    a.e("s_lshl_b32 s43, s43, 11")
    a.e(f"s_add_u32 s42, s42, {WS_KV}")
    a.e(f"s_add_u32 s43, s43, {WS_KV}")
    a.e(f"s_add_u32 s44, s42, {5*256*2048}")
    a.e(f"s_add_u32 s45, s43, {5*256*2048}")
    a.e("v_bfe_u32 v17, v2, 4, 1")
    a.e("v_lshlrev_b32 v17, 17, v17")
    a.e("v_and_b32 v18, 15, v2")
    a.e("v_lshl_add_u32 v18, v4, 4, v18")
    a.e("v_lshl_add_u32 v17, v18, 4, v17")
    VM = [20, 168]; VR = [36, 184]
    def load_v(sl):
        for i in range(4):
            a.e(f"ds_read_b128 {vr(VM[sl]+4*i,4)}, v{(8,19)[sl]} offset:{i*32}")
            a.e(f"ds_read_b128 {vr(VR[sl]+4*i,4)}, v{(8,19)[sl]} offset:{512+i*32}")
    a.e("s_waitcnt lgkmcnt(0)")
    add_csr(CSR)
    a.e(f"v_add_f32 v{CSL}, v{CSL}, v{CSL+1}")
    a.e(f"v_add_f32 v{CSL+2}, v{CSL+2}, v{CSL+3}")
    load_v(0); load_v(1)
    qk_part(CSR)
    a.e("s_waitcnt lgkmcnt(0)")
    for s in range(1, 3):
        if s == 2:
            a.e("s_cmp_ge_u32 s17, 14")
            a.e("s_cbranch_scc1 K1_qdone")
        for sl in range(2):
            d = ACC + 16*(3*sl + s)
            for i in range(8):
                a.e(f"v_pk_fma_f32 {vr(d+2*i,2)}, {vr(VM[sl]+2*i,2)}, {vr(CSL+2*(s-1),2)}, {vr(d+2*i,2)} op_sel_hi:[1,0,1] neg_lo:[0,1,0] neg_hi:[0,1,0]")
            for i in range(8):
                a.e(f"v_pk_mul_f32 {vr(d+2*i,2)}, {vr(d+2*i,2)}, {vr(VR[sl]+2*i,2)}")
            so_ = f"s{42+2*(s-1)+sl}"
            pack(d, 0, P+8); store(P+8, 17, so_, 1024)
            pack(d, 1, P); store(P, 17, so_, 1536)
    a.label("K1_qdone")
    if not DIAG: stamp(a, 5)
    stamp(a, 6)
    stamp_flush(a, 7, 50, 51, 16, 0); a.e("s_endpgm")

    a.label("K1_first")
    a.e("s_waitcnt vmcnt(0)")
    a.e("s_barrier")
    a.e("s_cmp_eq_u32 s16, 0")
    a.e("s_cbranch_scc0 K1_firstback")
    a.e("s_mov_b64 exec, 1")
    a.e("buffer_store_byte v61, v62, s[8:11], s46 offen sc1")
    a.e("s_mov_b64 exec, -1")
    a.e("s_branch K1_firstback")
    mainloop("Z", True)
    exchange()
    load_csr(1, CSR)
    C1 = 16; C0 = 18; ONE = 20; G = 24; S1 = [32, 34]; S2 = [36, 38]; PZ = 40
    k0 = -2.0 * LOG2E * 0.7978845608028654
    a.e(f"v_mov_b32 v{C0}, {f32(k0)}")
    a.e(f"v_mov_b32 v{C1}, {f32(k0*0.044715)}")
    a.e(f"v_mov_b32 v{ONE}, 1.0")
    for r in range(32, 40): a.e(f"v_mov_b32 v{r}, 0")
    a.e("s_mul_i32 s42, s22, 43")
    a.e("s_mul_i32 s43, s23, 43")
    a.e("s_lshl_b32 s34, s17, 2")
    a.e("s_lshl_b32 s35, s21, 1")
    a.e("s_add_u32 s34, s34, s35")
    a.e("s_add_u32 s42, s42, s34")
    a.e("s_add_u32 s43, s43, s34")
    a.e("s_lshl_b32 s42, s42, 10")
    a.e("s_lshl_b32 s43, s43, 10")
    a.e(f"s_add_u32 s42, s42, {WS_Z1F}")
    a.e(f"s_add_u32 s43, s43, {WS_Z1F}")
    def gelu_half(d):
        for i in range(4):
            a.e(f"v_pk_mul_f32 {vr(G+2*i,2)}, {vr(d+2*i,2)}, {vr(d+2*i,2)}")
        for i in range(4):
            a.e(f"v_pk_fma_f32 {vr(G+2*i,2)}, {vr(G+2*i,2)}, {vr(C1,2)}, {vr(C0,2)} op_sel_hi:[1,0,0]")
        for i in range(4):
            a.e(f"v_pk_mul_f32 {vr(G+2*i,2)}, {vr(G+2*i,2)}, {vr(d+2*i,2)}")
        for i in range(8):
            a.e(f"v_exp_f32 v{G+i}, v{G+i}")
        for i in range(4):
            a.e(f"v_pk_add_f32 {vr(G+2*i,2)}, {vr(G+2*i,2)}, {vr(ONE,2)} op_sel_hi:[1,0]")
        for i in range(8):
            a.e(f"v_rcp_f32 v{G+i}, v{G+i}")
        for i in range(4):
            a.e(f"v_pk_mul_f32 {vr(d+2*i,2)}, {vr(d+2*i,2)}, {vr(G+2*i,2)}")
    a.e("s_waitcnt lgkmcnt(0)")
    add_csr(CSR)
    load_csr(2, T)
    for sl in range(2):
        d = ACC + 16*(3*sl + 1)
        fold_T(d, sl, CSR, RR[sl])
        for half in range(2):
            if half == 1:
                a.e("s_cmp_eq_u32 s34, 42")
                a.e(f"s_cbranch_scc1 K1_noblk{sl}")
            gelu_half(d + 8*half)
            for i in range(4):
                a.e(f"v_pk_add_f32 {vr(S1[sl],2)}, {vr(S1[sl],2)}, {vr(d+8*half+2*i,2)}")
                a.e(f"v_pk_fma_f32 {vr(S2[sl],2)}, {vr(d+8*half+2*i,2)}, {vr(d+8*half+2*i,2)}, {vr(S2[sl],2)}")
            if half == 1:
                a.label(f"K1_noblk{sl}")
    for r in S1 + S2:
        a.e(f"v_add_f32 v{r}, v{r}, v{r+1}")
    a.e("s_nop 1")
    a.e(f"v_permlane32_swap_b32 v{S1[0]}, v{S1[1]}")
    a.e(f"v_permlane32_swap_b32 v{S2[0]}, v{S2[1]}")
    a.e(f"v_add_f32 v{S1[0]}, v{S1[0]}, v{S1[1]}")
    a.e(f"v_add_f32 v{S1[0]+1}, v{S2[0]}, v{S2[1]}")
    a.e(f"v_or_b32 v{S1[0]+1}, 0x80000000, v{S1[0]+1}")
    a.e(f"buffer_store_dwordx2 {vr(S1[0],2)}, v60, s[12:15], s44 offen sc1")
    a.e("s_barrier")
    a.e("s_waitcnt lgkmcnt(0)")
    add_csr(T)
    load_csr(0, CSR)
    for sl in range(2):
        d = ACC + 16*(3*sl + 2)
        fold_T(d, sl, T, RR[sl])
        for half in range(2):
            gelu_half(d + 8*half)
            pack(d, half, PZ + 8*sl + 4*half)
    for sl in range(2):
        store(PZ + 8*sl, 11, f"s{42+sl}")
    a.e("s_cmp_eq_u32 s34, 42")
    a.e("s_cbranch_scc1 K1_noz1")
    for sl in range(2):
        store(PZ + 8*sl + 4, 11, f"s{42+sl}", 1024)
    a.label("K1_noz1")
    a.e("s_waitcnt lgkmcnt(0)")
    add_csr(CSR)
    qk_part(CSR)
    a.e("s_lshl_b32 s35, s16, 13")
    a.e("s_add_u32 s35, s35, 8192")
    a.e(f"v_mul_u32_u24 v16, {RST}, v3")
    a.e("v_lshl_add_u32 v16, v4, 3, v16")
    a.e("v_add_u32 v16, s35, v16")
    a.e("v_bfe_u32 v17, v2, 2, 2")
    a.e("v_lshl_add_u32 v17, v4, 3, v17")
    a.e(f"v_mul_u32_u24 v17, {RST}, v17")
    a.e("v_bfe_u32 v18, v2, 4, 1")
    a.e("v_lshl_add_u32 v17, v18, 5, v17")
    a.e("v_and_b32 v18, 3, v2")
    a.e("v_lshl_add_u32 v17, v18, 3, v17")
    a.e("v_add_u32 v17, s35, v17")
    a.e("s_lshr_b32 s34, s34, 1")
    a.e("s_mul_i32 s35, s34, 43")
    a.e("s_lshr_b32 s35, s35, 7")
    a.e("s_mul_i32 s44, s35, 3")
    a.e("s_sub_u32 s44, s34, s44")
    a.e("s_lshl_b32 s44, s44, 10")
    a.e("s_mul_i32 s35, s35, 393216")
    a.e("s_add_u32 s44, s44, s35")
    a.e(f"s_add_u32 s44, s44, {WS_Z2F}")
    a.e("s_mul_i32 s46, s22, 6144")
    a.e("s_mul_i32 s47, s23, 6144")
    a.e("s_add_u32 s46, s46, s44")
    a.e("s_add_u32 s47, s47, s44")
    if not DIAG: stamp(a, 5)
    a.e("s_barrier")
    stamp(a, 6)
    a.e(f"ds_read_b32 v{MU[0]}, v6 offset:1024")
    a.e(f"ds_read_b32 v{RR[0]}, v6 offset:1536")
    a.e(f"ds_read_b32 v{MU[1]}, v7 offset:1024")
    a.e(f"ds_read_b32 v{RR[1]}, v7 offset:1536")
    for sl in range(2):
        d = ACC + 16*(3*sl + 1)
        a.e(f"s_waitcnt lgkmcnt({2 if sl == 0 else 4})")
        for i in range(8):
            a.e(f"v_pk_fma_f32 {vr(d+2*i,2)}, {vr(d+2*i,2)}, {vr(RR[sl],2)}, {vr(MU[sl],2)} op_sel_hi:[1,0,0] neg_lo:[0,0,1] neg_hi:[0,0,1]")
        for i in range(8):
            a.e(f"v_cvt_pk_bf16_f32 v{PZ+8*sl+i}, v{d+2*i}, v{d+2*i+1}")
        for i in range(4):
            a.e(f"ds_write_b64 v16, {vr(PZ+8*sl+2*i,2)} offset:{sl*32*RST+16*i}")
    for sl in range(2):
        for kb in range(2):
            for p in range(2):
                a.e(f"ds_read_b64_tr_b16 {vr(T+8*sl+4*kb+2*p,2)}, v17 offset:{(32*sl+16*kb+4*p)*RST}")
    for sl in range(2):
        for kb in range(2):
            a.e(f"s_waitcnt lgkmcnt({6-4*sl-2*kb})")
            store(T+8*sl+4*kb, 11, f"s{46+sl}", 3072*kb)
    ht_mark(a, 2, 16, 240)
    stamp_flush(a, 7, 50, 51, 16, 0); a.e("s_endpgm")
    return name, kernel_desc(name, 256, 102 if (STAMP or HT) else 56), f"; @launch kernel={name} grid=(256,1,1) block=(512,1,1) lds=163840"
```

```python
from common import *

BIAS = 64.0
RING = 0
GST = 65536
NRM = 131072
FLG = 160768
LDS_TOTAL = 163840
WS_FLAGS = WS_CNT

def gen_k2(a):
    name = "mix_kernel"
    kernel_head(a, name)
    a.e("s_cmp_ge_u32 s2, 256")
    a.e("s_cbranch_scc1 M_exit")
    a.e("s_load_dwordx2 s[30:31], s[0:1], 80")
    a.e("s_load_dwordx4 s[24:27], s[0:1], 40")
    a.e("v_lshrrev_b32 v1, 6, v0")
    a.e("v_and_b32 v2, 63, v0")
    a.e("v_readfirstlane_b32 s16, v1")
    a.e("v_lshlrev_b32 v3, 2, v2")
    a.e(f"v_add_u32 v3, {FLG}, v3")
    a.e("v_mov_b32 v4, 0")
    a.e("ds_write_b32 v3, v4")
    stamp_rt(a, 0); stamp(a, 1)
    if DIAG:
        for r in range(72, 78): a.e(f"s_mov_b32 s{r}, 0")
    a.e("s_waitcnt lgkmcnt(0)")
    a.e("s_barrier")
    ht_mark(a, 3, 16, 160)
    a.e("s_cmp_ge_u32 s16, 8")
    a.e("s_cbranch_scc1 M_gemm")
    attn(a)
    a.label("M_exit")
    a.e("s_endpgm")
    a.label("M_gemm")
    gemm_role(a)
    return name, kernel_desc(name, 168, 102 if (STAMP or HT) else 56), f"; @launch kernel={name} grid=(256,1,1) block=(768,1,1) lds={LDS_TOTAL}"

def attn(a):
    Q = [4, 8]; CM = [12, 28]; S = [44, 60]; P = [76, 84]; O = [92, 108]; K = 124; V = [128, 136]
    AK = 144; AV = 145; VD = 146; FA = 147; FW = 148; FV = 149; T = 150; CNT = 151; L16 = 152; THR = 153
    AMAP = int(os.environ.get("AMAP", "0"))
    PV1 = 4; PV2 = 10
    if AMAP == 0:
        a.e("s_and_b32 s17, s2, 7")
        a.e("s_lshl_b32 s17, s17, 2")
        a.e("s_bfe_u32 s18, s2, 0x20003")
        a.e("s_or_b32 s17, s17, s18")
        a.e("s_lshr_b32 s18, s2, 5")
    else:
        a.e("s_lshr_b32 s17, s2, 3")
        a.e("s_and_b32 s18, s2, 7")
    a.e("s_and_b32 s19, s16, 3")
    a.e("s_lshr_b32 s33, s16, 2")
    a.e(f"v_lshlrev_b32 v{L16}, 4, v2")
    a.e("s_lshl_b32 s23, s19, 11")
    a.e(f"v_add_u32 v{VD}, s23, v{L16}")
    a.e("s_lshl_b32 s24, s17, 17")
    a.e(f"s_add_u32 s24, s24, {WS_KV}")
    a.e("s_lshl_b32 s20, s33, 16")
    a.e("s_add_u32 s20, s20, s24")
    a.e("s_lshl_b32 s21, s18, 3")
    a.e("s_lshl_b32 s22, s19, 1")
    a.e("s_add_u32 s21, s21, s22")
    a.e("s_lshl_b32 s22, s17, 6")
    a.e("s_add_u32 s22, s22, s21")
    a.e("s_lshl_b32 s22, s22, 10")
    a.e("s_lshl_b32 s34, s33, 15")
    a.e("s_add_u32 s23, s23, s34")
    a.e("s_waitcnt lgkmcnt(0)")
    srd(a, 12, 30, 31, WS_BYTES)
    def dma_chunk(slot):
        a.e(f"s_add_u32 m0, s23, {slot*8192}")
        a.e("s_add_u32 s20, s20, 8192")
        a.e(f"buffer_load_dwordx4 v{VD}, s[12:15], s20 offen lds")
        a.e(f"buffer_load_dwordx4 v{VD}, s[12:15], s20 offen offset:1024 lds")
    a.e("s_sub_u32 s20, s20, 8192")
    a.e(f"buffer_load_dwordx4 {vr(Q[0],4)}, v{L16}, s[12:15], s22 offen")
    a.e(f"buffer_load_dwordx4 {vr(S[1],4)}, v{L16}, s[12:15], s24 offen")
    a.e(f"buffer_load_dwordx4 {vr(Q[1],4)}, v{L16}, s[12:15], s22 offen offset:1024")
    for c in range(3): dma_chunk(c)
    a.e(f"v_lshlrev_b32 v{T}, 2, v2")
    a.e(f"v_add_u32 v{T}, {FLG}, v{T}")
    a.e(f"v_and_b32 v{FA}, 7, v2")
    a.e(f"v_lshlrev_b32 v{FA}, 2, v{FA}")
    a.e("s_lshl_b32 s36, s33, 5")
    a.e(f"s_add_u32 s36, s36, {FLG}")
    a.e(f"v_add_u32 v{FA}, s36, v{FA}")
    a.e(f"v_add_u32 v{FW}, 256, v{T}")
    a.e("s_lshl_b32 s37, s19, 2")
    a.e("s_add_u32 s37, s37, s36")
    a.e(f"v_writelane_b32 v{FW}, s37, 0")
    a.e(f"v_add_u32 v{AK}, s34, v{L16}")
    a.e(f"v_and_b32 v{AV}, 15, v2")
    a.e(f"v_lshlrev_b32 v{AV}, 4, v{AV}")
    a.e(f"v_lshrrev_b32 v{T}, 5, v2")
    a.e(f"v_lshl_add_u32 v{AV}, v{T}, 8, v{AV}")
    a.e("s_add_u32 s38, s34, 1024")
    a.e(f"v_add_u32 v{AV}, s38, v{AV}")
    a.e("s_mov_b32 s26, 0x0000ffff")
    a.e("s_mov_b32 s27, 0x0000ffff")
    a.e("s_mov_b32 s40, 0x0f0f0f0f")
    a.e("s_mov_b32 s41, 0x0f0f0f0f")
    a.e("s_mov_b32 s42, 0xf0f0f0f0")
    a.e("s_mov_b32 s43, 0xf0f0f0f0")
    a.e(f"v_and_b32 v{T}, 27, v2")
    a.e(f"v_cmp_eq_u32 vcc, 16, v{T}")
    a.e(f"v_mov_b32 v{T}, 0x3f803f80")
    a.e(f"v_bfe_u32 v{THR}, v2, 2, 1")
    a.e(f"v_lshlrev_b32 v{THR}, 1, v{THR}")
    a.e(f"v_sub_u32 v{THR}, 2, v{THR}")
    a.e(f"v_cndmask_b32 v{V[0]}, 0, v{T}, vcc")
    for r in range(1, 16): a.e(f"v_mov_b32 v{V[0]+r}, v{V[0]}")
    for r in range(32): a.e(f"v_mov_b32 v{O[0]+r}, 0")
    for r in range(8): a.e(f"v_mov_b32 v{P[1]+r}, 0")
    def rowmax(src, dst):
        a.e(f"v_max3_f32 v{dst}, v{src}, v{src+1}, v{src+2}")
        for i in range(3, 15, 2):
            a.e(f"v_max3_f32 v{dst}, v{dst}, v{src+i}, v{src+i+1}")
        a.e(f"v_max_f32 v{dst}, v{dst}, v{src+15}")
    def cross_half_max(dst, tmp):
        a.e(f"v_mov_b32 v{tmp}, v{dst}")
        a.e("s_nop 1")
        a.e(f"v_permlane32_swap_b32 v{dst}, v{tmp}")
        a.e(f"v_max_f32 v{dst}, v{dst}, v{tmp}")
    a.e("s_waitcnt vmcnt(6)")
    mfma32(a, CM[0], S[1], Q[0], "0")
    mfma32(a, CM[1], S[1], Q[1], "0")
    a.e("s_waitcnt vmcnt(4)")
    a.e(f"v_mov_b32 v{CNT}, 1")
    a.e(f"ds_write_b32 v{FW}, v{CNT}")
    a.e("s_nop 7")
    for qb in range(2):
        rowmax(CM[qb], T)
        cross_half_max(T, FV)
        a.e(f"v_sub_f32 v{CM[qb]}, {f32(-BIAS)}, v{T}")
        for r in range(1, 16): a.e(f"v_mov_b32 v{CM[qb]+r}, v{CM[qb]}")
    a.label("AT_spin0")
    a.e(f"ds_read_b32 v{FV}, v{FA}")
    a.e("s_waitcnt lgkmcnt(0)")
    a.e(f"v_cmp_gt_u32 vcc, 1, v{FV}")
    a.e("s_nop 0")
    a.e("s_and_b64 vcc, vcc, s[40:41]")
    a.e("s_cbranch_vccnz AT_spin0")
    stamp(a, 2)
    a.e(f"ds_read_b128 {vr(K,4)}, v{AK}")
    a.e("s_mov_b32 s28, 0")
    a.e("s_waitcnt lgkmcnt(0)")
    mfma32(a, S[0], K, Q[0], CM[0])
    a.e("s_nop 9")
    a.label("AT_loop")
    for cc in range(4):
      for kb in range(4):
        for qb in range(2):
            a.c(f"tile cc={cc} kb={kb} qb={qb}")
            if qb == 1:
                a.e("s_waitcnt lgkmcnt(0)")
            if (kb, qb) == (3, 0):
                a.e(f"v_cmp_gt_u32 vcc, v{THR}, v{FV}")
                a.e(f"v_add_u32 v{THR}, 1, v{THR}")
                a.e(f"s_cbranch_vccnz AT_slow{cc}")
                a.label(f"AT_back{cc}")
            mfma32(a, S[qb^1], K, Q[qb^1], CM[qb^1])
            if qb == 0:
                a.e(f"ds_read_b128 {vr(K,4)}, v{AK} offset:{((4*cc+kb+1)&15)*2048}")
                a.e("s_mov_b64 exec, s[26:27]")
                a.e(f"ds_read_b128 {vr(V[kb&1],4)}, v{AV} offset:{(4*cc+kb)*2048}")
                a.e(f"ds_read_b128 {vr(V[kb&1]+4,4)}, v{AV} offset:{(4*cc+kb)*2048+512}")
                a.e("s_mov_b64 exec, -1")
                if kb == 2:
                    a.e(f"ds_read_b32 v{FV}, v{FA}")
                if kb == 3:
                    a.e(f"ds_write_b32 v{FW}, v{CNT} offset:16")
                    if cc > 0:
                        a.e("s_cmp_eq_u32 s28, 0")
                        a.e(f"s_cbranch_scc0 AT_nodma{cc}")
                    if DIAG: tic(a)
                    dma_chunk((cc + 3) & 3)
                    if DIAG: toc(a, 76)
                    if cc > 0:
                        a.label(f"AT_dmaback{cc}")
                if kb == 1:
                    a.e(f"v_add_u32 v{T}, 1, v{CNT}")
                    if DIAG: tic(a)
                    a.e("s_waitcnt vmcnt(2)")
                    if DIAG: toc(a, 72)
                    a.e(f"ds_write_b32 v{FW}, v{T}")
            if (kb, qb) == (3, 1):
                a.e(f"v_add_u32 v{CNT}, 1, v{CNT}")
            s = S[qb]; p = P[qb]
            vb = V[(kb - 1) & 1] if qb == 0 else V[kb & 1]
            for i in range(16):
                a.e(f"v_exp_f32 v{s+i}, v{s+i}")
                if i % 2 == 1 and 3 <= i <= 13:
                    k = (i - 3) // 2
                    a.e(f"v_cvt_pk_bf16_f32 v{p+k}, v{s+2*k}, v{s+2*k+1}")
                if i == PV1:
                    mfma32(a, O[qb^1], vb, P[qb^1], O[qb^1])
                if i == PV2:
                    mfma32(a, O[qb^1], vb+4, P[qb^1]+4, O[qb^1])
            a.e(f"v_cvt_pk_bf16_f32 v{p+6}, v{s+12}, v{s+13}")
            a.e(f"v_cvt_pk_bf16_f32 v{p+7}, v{s+14}, v{s+15}")
    a.e("s_add_u32 s28, s28, 1")
    a.e("s_cmp_lt_u32 s28, 2")
    a.e("s_cbranch_scc1 AT_loop")
    stamp(a, 3)
    mfma32(a, O[1], V[1], P[1], O[1])
    mfma32(a, O[1], V[1]+4, P[1]+4, O[1])
    a.e("s_lshl_b32 s37, s19, 2")
    a.e(f"s_add_u32 s37, s37, {FLG+80}")
    a.e(f"v_mov_b32 v{T}, s37")
    a.e(f"v_mov_b32 v{CNT}, 1")
    a.e("s_mov_b64 exec, 1")
    a.e(f"ds_add_rtn_u32 v{FV}, v{T}, v{CNT}")
    a.e("s_mov_b64 exec, -1")
    a.e("s_lshl_b32 s36, s19, 12")
    a.e("s_add_u32 s37, s36, s34")
    a.e(f"v_add_u32 v{AK}, s37, v{L16}")
    a.e("s_xor_b32 s38, s33, 1")
    a.e("s_lshl_b32 s38, s38, 15")
    a.e("s_add_u32 s38, s38, s36")
    a.e(f"v_add_u32 v{AV}, s38, v{L16}")
    a.e(f"v_lshlrev_b32 v{VD}, 3, v2")
    a.e("s_lshl_b32 s37, s19, 9")
    a.e(f"s_add_u32 s37, s37, {FLG+768}")
    a.e(f"v_add_u32 v{VD}, s37, v{VD}")
    a.e("s_waitcnt lgkmcnt(0)")
    a.e(f"v_readfirstlane_b32 s37, v{FV}")
    a.e(f"v_mov_b32 v{O[0]+9}, v{O[1]+8}")
    a.e("s_nop 3")
    a.e("s_cmp_eq_u32 s37, 0")
    a.e("s_cbranch_scc0 AT_last")
    a.label("AT_wfree")
    a.e(f"ds_read_b32 v{FV}, v{FA}")
    a.e("s_waitcnt lgkmcnt(0)")
    a.e(f"v_cmp_gt_u32 vcc, 6, v{FV}")
    a.e("s_nop 0")
    a.e("s_and_b64 vcc, vcc, s[42:43]")
    a.e("s_cbranch_vccnz AT_wfree")
    for qb in range(2):
        for k in range(2):
            a.e(f"ds_write_b128 v{AK}, {vr(O[qb]+4*k,4)} offset:{(2*qb+k)*1024}")
    a.e(f"ds_write_b64 v{VD}, {vr(O[0]+8,2)}")
    a.e(f"ds_write_b32 v{T}, v{CNT} offset:16")
    stamp_flush(a, 7 if DIAG else 4, 30, 31, 16, 1, vt=156)
    a.e("s_endpgm")
    a.label("AT_last")
    a.e(f"ds_read_b32 v{FV}, v{T} offset:16")
    a.e("s_waitcnt lgkmcnt(0)")
    a.e(f"v_cmp_eq_u32 vcc, 0, v{FV}")
    a.e("s_nop 0")
    a.e("s_cbranch_vccnz AT_last")
    for qb in range(2):
        for k in range(2):
            a.e(f"ds_read_b128 {vr(S[qb]+4*k,4)}, v{AV} offset:{(2*qb+k)*1024}")
    a.e(f"ds_read_b64 {vr(S[0]+8,2)}, v{VD}")
    a.e("s_mul_i32 s29, s21, 75")
    a.e("s_add_u32 s29, s29, s17")
    a.e("s_lshl_b32 s29, s29, 10")
    a.e(f"s_add_u32 s29, s29, {WS_ACT}")
    a.e("s_mov_b32 s36, 0x7f800000")
    a.e(f"s_mov_b32 s37, {f32(2.0**-100)}")
    a.e("s_waitcnt lgkmcnt(0)")
    a.e(f"v_mov_b32 v{S[1]+8}, v{S[0]+9}")
    a.e("s_mov_b64 s[38:39], 0")
    a.c("safety check of the stand-in max: overflow / NaN / vanishing magnitudes -> redo with the true max")
    for qb in range(2):
        o = O[qb]
        for i in range(9):
            a.e(f"v_add_f32 v{o+i}, v{o+i}, v{S[qb]+i}")
        a.e(f"v_add_f32 v{T}, abs(v{o}), abs(v{o+8})")
        for i in range(1, 8):
            a.e(f"v_add_f32 v{T}, abs(v{o+i}), v{T}")
        a.e(f"v_min3_f32 v{FV}, abs(v{o}), abs(v{o+1}), abs(v{o+2})")
        for i in range(3, 7, 2):
            a.e(f"v_min3_f32 v{FV}, v{FV}, abs(v{o+i}), abs(v{o+i+1})")
        a.e(f"v_min_f32 v{FV}, v{FV}, abs(v{o+7})")
        a.e(f"v_cmp_ngt_f32 vcc, s36, v{T}")
        a.e(f"v_cmp_gt_f32 s[46:47], s37, v{FV}")
        a.e("s_or_b64 s[38:39], s[38:39], vcc")
        a.e("s_nop 0")
        a.e("s_or_b64 s[38:39], s[38:39], s[46:47]")
    a.e("s_cmp_lg_u64 s[38:39], 0")
    if os.environ.get("FORCE_SLOW"):
        a.e("s_branch AT_redo")
    a.e("s_cbranch_scc1 AT_redo")
    a.label("AT_fin")
    for qb in range(2):
        o = O[qb]
        a.e(f"v_rcp_f32 v{T}, v{o+8}")
        a.e("s_nop 0")
        for i in range(8):
            a.e(f"v_mul_f32 v{o+i}, v{o+i}, v{T}")
        for i in range(4):
            a.e(f"v_cvt_pk_bf16_f32 v{P[qb]+i}, v{o+2*i}, v{o+2*i+1}")
        a.e(f"buffer_store_dwordx4 {vr(P[qb],4)}, v{L16}, s[12:15], s29 offen")
        a.e(f"s_add_u32 s29, s29, {75*1024}")
    ht_mark(a, 5, 19, 160)
    stamp_flush(a, 7 if DIAG else 4, 30, 31, 16, 1, vt=156)
    a.e("s_endpgm")
    for cc in range(4):
        a.label(f"AT_slow{cc}")
        if DIAG: a.e(f"s_add_u32 s74, s74, 1")
        a.e("s_sleep 2")
        a.e(f"ds_read_b32 v{FV}, v{FA}")
        a.e("s_waitcnt lgkmcnt(0)")
        a.c("THR was already advanced: ready iff FV+1 >= THR")
        a.e(f"v_add_u32 v{FV}, 1, v{FV}")
        a.e(f"v_cmp_gt_u32 vcc, v{THR}, v{FV}")
        a.e("s_nop 0")
        a.e(f"s_cbranch_vccnz AT_slow{cc}")
        a.e(f"s_branch AT_back{cc}")
        if cc > 0:
            a.label(f"AT_nodma{cc}")
            a.e("s_waitcnt vmcnt(0)")
            a.e(f"s_branch AT_dmaback{cc}")
    a.label("AT_redo")
    a.e(f"v_mov_b32 v{T}, 0xff800000")
    a.e(f"v_mov_b32 v{CNT}, 0xff800000")
    a.e("s_mov_b32 s20, s24")
    a.e("s_mov_b32 s28, 0")
    a.label("AT_r1")
    a.e(f"buffer_load_dwordx4 {vr(K,4)}, v{L16}, s[12:15], s20 offen")
    a.e("s_waitcnt vmcnt(0)")
    mfma32(a, S[0], K, Q[0], "0")
    mfma32(a, S[1], K, Q[1], "0")
    a.e("s_add_u32 s20, s20, 2048")
    a.e("s_add_u32 s28, s28, 1")
    a.e("s_nop 11")
    for i in range(0, 16, 2):
        a.e(f"v_max3_f32 v{T}, v{T}, v{S[0]+i}, v{S[0]+i+1}")
        a.e(f"v_max3_f32 v{CNT}, v{CNT}, v{S[1]+i}, v{S[1]+i+1}")
    a.e("s_cmp_lt_u32 s28, 64")
    a.e("s_cbranch_scc1 AT_r1")
    for qb, m in ((0, T), (1, CNT)):
        cross_half_max(m, FV)
        a.e(f"v_sub_f32 v{CM[qb]}, 0, v{m}")
        for r in range(1, 16): a.e(f"v_mov_b32 v{CM[qb]+r}, v{CM[qb]}")
    for r in range(32): a.e(f"v_mov_b32 v{O[0]+r}, 0")
    a.e(f"v_and_b32 v{AV}, 15, v2")
    a.e(f"v_lshlrev_b32 v{AV}, 4, v{AV}")
    a.e(f"v_lshrrev_b32 v{T}, 5, v2")
    a.e(f"v_lshl_add_u32 v{AV}, v{T}, 8, v{AV}")
    a.e("s_mov_b32 s20, s24")
    a.e("s_mov_b32 s28, 0")
    a.label("AT_r2")
    a.e(f"buffer_load_dwordx4 {vr(K,4)}, v{L16}, s[12:15], s20 offen")
    a.e("s_mov_b64 exec, s[26:27]")
    a.e(f"buffer_load_dwordx4 {vr(V[0],4)}, v{AV}, s[12:15], s20 offen offset:1024")
    a.e(f"buffer_load_dwordx4 {vr(V[0]+4,4)}, v{AV}, s[12:15], s20 offen offset:1536")
    a.e("s_mov_b64 exec, -1")
    a.e("s_waitcnt vmcnt(0)")
    mfma32(a, S[0], K, Q[0], CM[0])
    mfma32(a, S[1], K, Q[1], CM[1])
    a.e("s_add_u32 s20, s20, 2048")
    a.e("s_add_u32 s28, s28, 1")
    a.e("s_nop 11")
    for qb in range(2):
        for i in range(16): a.e(f"v_exp_f32 v{S[qb]+i}, v{S[qb]+i}")
        a.e("s_nop 0")
        for k in range(8): a.e(f"v_cvt_pk_bf16_f32 v{P[qb]+k}, v{S[qb]+2*k}, v{S[qb]+2*k+1}")
        a.e("s_nop 1")
        mfma32(a, O[qb], V[0], P[qb], O[qb])
        mfma32(a, O[qb], V[0]+4, P[qb]+4, O[qb])
    a.e("s_cmp_lt_u32 s28, 64")
    a.e("s_cbranch_scc1 AT_r2")
    a.e("s_nop 11")
    a.e("s_branch AT_fin")

RSZ = 1552
def gemm_role(a):
    W = 48
    GF = 164; GW = 165; GV = 166; GC = 167
    if os.environ.get("NOGEMM"):
        stamp(a, 2); stamp(a, 3); stamp_flush(a, 7 if DIAG else 4, 30, 31, 16, 1, vt=4); a.e("s_endpgm"); a.label("G_dead")
    a.e(f"s_setprio {os.environ.get('GPRIO', '2')}")
    a.e(f"s_sub_u32 s{W}, s16, 8")
    ACC = 64; ZF = [16, 28, 40]; WF = [4, 52]
    AE = 60; AO = 61; AZ = 62; AB = 160
    a.e("s_and_b32 s17, s2, 7")
    a.e("s_lshl_b32 s17, s17, 2")
    a.e("s_bfe_u32 s18, s2, 0x20003")
    a.e("s_or_b32 s17, s17, s18")
    a.e("s_lshr_b32 s18, s2, 5")
    srd(a, 12, 30, 31, WS_BYTES)
    srd(a, 4, 24, 25, 8*MB)
    a.e(f"v_lshrrev_b32 v{AZ}, 4, v2")
    a.e("v_and_b32 v11, 7, v2")
    a.e(f"v_xor_b32 v{AZ}, v{AZ}, v11")
    a.e(f"v_lshlrev_b32 v{AZ}, 4, v{AZ}")
    a.e("v_lshrrev_b32 v11, 3, v2")
    a.e(f"v_lshl_add_u32 v{AE}, v11, 12, v{AZ}")
    a.e(f"v_xor_b32 v{AO}, 64, v{AE}")
    a.e(f"v_add_u32 v{AO}, 32768, v{AO}")
    a.e("s_lshl_b32 s19, s17, 18")
    a.e(f"s_lshl_b32 s20, s{W}, 10")
    a.e("s_add_u32 s19, s19, s20")
    a.e(f"s_lshl_b32 s21, s{W}, 14")
    a.e(f"s_add_u32 s21, s21, {GST}")
    a.e("s_mov_b32 s22, s21")
    def dma_stage():
        for i2 in range(4):
            a.e(f"s_add_u32 m0, s22, {2*i2*1024}")
            a.e(f"s_add_u32 s28, s19, {i2*65536}")
            a.e(f"buffer_load_dwordx4 v{AE}, s[4:7], s28 offen lds")
            a.e(f"s_add_u32 m0, s22, {(2*i2+1)*1024}")
            a.e("s_nop 0")
            a.e(f"buffer_load_dwordx4 v{AO}, s[4:7], s28 offen lds")
        a.e("s_add_u32 s19, s19, 128")
        a.e("s_xor_b32 s22, s22, 8192")
    a.e(f"v_and_b32 v{GF}, 3, v2")
    a.e(f"v_lshlrev_b32 v{GF}, 2, v{GF}")
    a.e(f"v_add_u32 v{GF}, {FLG+64}, v{GF}")
    a.e(f"v_lshlrev_b32 v{GW}, 2, v2")
    a.e(f"v_add_u32 v{GW}, {FLG+256}, v{GW}")
    a.e(f"s_lshl_b32 s28, s{W}, 2")
    a.e(f"s_add_u32 s28, s28, {FLG+64}")
    a.e(f"v_writelane_b32 v{GW}, s28, 0")
    nsync = [0]
    def gsync():
        nsync[0] += 1; k = nsync[0]
        a.e(f"v_mov_b32 v{GC}, {k}")
        a.e(f"ds_write_b32 v{GW}, v{GC}")
        a.label(f"G_sync{k}")
        a.e(f"ds_read_b32 v{GV}, v{GF}")
        a.e("s_waitcnt lgkmcnt(0)")
        a.e(f"v_cmp_gt_u32 vcc, {k}, v{GV}")
        a.e("s_nop 0")
        a.e(f"s_cbranch_vccz G_synced{k}")
        a.e("s_sleep 1")
        a.e(f"s_branch G_sync{k}")
        a.label(f"G_synced{k}")
    a.e("s_mov_b32 s35, 0xffff0000")
    a.e("v_and_b32 v3, 11, v2")
    a.e("v_lshlrev_b32 v3, 2, v3")
    a.e(f"v_add_u32 v3, {FLG}, v3")
    a.label("G_hold")
    a.e("s_sleep 4")
    a.e("ds_read_b32 v4, v3")
    a.e("s_waitcnt lgkmcnt(0)")
    a.e("v_cmp_eq_u32 vcc, 0, v4")
    a.e("s_nop 0")
    a.e("s_cbranch_vccnz G_hold")
    stamp(a, 2)
    dma_stage()
    a.e("s_mul_i32 s23, s18, 393216")
    a.e(f"s_mul_i32 s29, s{W}, {32*3072}")
    a.e("s_add_u32 s23, s23, s29")
    a.e(f"s_add_u32 s23, s23, {WS_Z2F}")
    a.e(f"v_lshlrev_b32 v{AZ}, 4, v2")
    a.e("v_and_b32 v13, 31, v2")
    a.e("v_lshrrev_b32 v14, 5, v2")
    a.e("v_bfe_u32 v3, v13, 1, 3")
    a.e("v_xor_b32 v3, v3, v14")
    a.e("v_lshlrev_b32 v3, 4, v3")
    a.e(f"v_lshl_add_u32 v{AB}, v13, 7, v3")
    a.e(f"v_add_u32 v{AB}, s21, v{AB}")
    for q in range(1, 4):
        a.e(f"v_xor_b32 v{AB+q}, {q<<5}, v{AB}")
    for r in range(96): a.e(f"v_mov_b32 v{ACC+r}, 0")
    ZSC = ""
    def zload(buf):
        for i in range(3):
            a.e(f"buffer_load_dwordx4 {vr(ZF[buf]+4*i,4)}, v{AZ}, s[12:15], s23 offen offset:{i*1024}" + ZSC)
        a.e("s_add_u32 s23, s23, 3072")
    zload(0); zload(1)
    if not os.environ.get("NOZPF"):
        a.e("v_lshlrev_b32 v59, 7, v2")
        a.e("s_and_b32 s28, s17, 3")
        a.e("s_mul_i32 s28, s28, 24576")
        a.e("s_add_u32 s28, s28, s23")
        for i in range(3):
            a.e(f"buffer_load_dword v63, v59, s[12:15], s28 offen" + ZSC)
            a.e("s_add_u32 s28, s28, 8192")
        a.e("s_waitcnt vmcnt(3)")
    a.e("s_mov_b32 s29, 0")
    a.e("s_mov_b32 s32, 0")
    a.e(f"s_setprio {os.environ.get('GPRIO2', '0')}")
    if os.environ.get("G_NOLOAD"):
        zload = lambda b: None
        dma_stage = lambda: None
    a.label("G2_loop")
    step = 0
    for st in range(3):
        for q in range(4):
            zb = step % 3
            if q == 0:
                a.e("s_waitcnt vmcnt(3)")
                a.e(f"ds_read_b128 {vr(WF[0],4)}, v{AB}")
                a.e(f"ds_read_b128 {vr(WF[0]+4,4)}, v{AB} offset:4096")
                zload((step + 2) % 3)
            else:
                zload((step + 2) % 3)
                a.e(f"s_waitcnt vmcnt({6 + (8 if q <= 2 else 0)})")
            wb = q & 1
            if q < 3:
                a.e(f"ds_read_b128 {vr(WF[wb^1],4)}, v{AB+q+1}")
                a.e(f"ds_read_b128 {vr(WF[wb^1]+4,4)}, v{AB+q+1} offset:4096")
                a.e("s_waitcnt lgkmcnt(2)")
            else:
                a.e("s_waitcnt lgkmcnt(0)")
            for aa in range(2):
                for i in range(3):
                    d = ACC + 16*(3*aa + i)
                    if not os.environ.get("G_NOMFMA"): mfma32(a, d, ZF[zb]+4*i, WF[wb]+4*aa, d)
            if q == 0:
                dma_stage()
            if q == 3:
                for k in range(4):
                    a.e(f"v_xor_b32 v{AB+k}, 8192, v{AB+k}")
                a.e("s_add_u32 s29, s29, 1")
                a.e("s_cmp_ge_u32 s29, 8")
                a.e("s_cbranch_scc1 G2_done")
            step += 1
    a.e("s_branch G2_loop")
    a.label("G2_done")
    stamp(a, 3)
    a.e(f"s_setprio {os.environ.get('GPRIO', '2')}")
    a.e(f"s_lshr_b32 s19, s{W}, 1")
    a.e("s_lshl_b32 s20, s17, 1")
    a.e("s_add_u32 s20, s20, s19")
    a.e(f"s_and_b32 s22, s{W}, 1")
    a.e("s_mul_i32 s22, s22, 3")
    a.e("s_mul_i32 s23, s18, 6")
    a.e("s_add_u32 s22, s22, s23")
    a.e("s_mul_i32 s23, s20, 43")
    a.e("s_add_u32 s23, s23, s22")
    a.e("s_lshl_b32 s23, s23, 10")
    a.e(f"s_add_u32 s23, s23, {WS_Z1F}")
    a.e("s_waitcnt vmcnt(0)")
    for r in range(3):
        a.e(f"buffer_load_dwordx4 {vr(16+4*r,4)}, v{AZ}, s[12:15], s23 offen offset:{r*1024}")
    a.e("s_mul_i32 s28, s20, 75")
    a.e("s_add_u32 s28, s28, s22")
    a.e("s_add_u32 s28, s28, 32")
    a.e("s_lshl_b32 s28, s28, 10")
    a.e(f"s_add_u32 s28, s28, {WS_ACT}")
    a.e("s_lshl_b32 s20, s20, 6")
    a.e("v_lshlrev_b32 v3, 1, v13")
    srd(a, 8, 26, 27, 4096)
    a.e(f"buffer_load_ushort v28, v3, s[8:11], s20 offen")
    gsync()
    for d in range(4):
        a.e(f"s_cmp_eq_u32 s{W}, {d}")
        a.e(f"s_cbranch_scc1 G_skipw{d}")
        a.e(f"s_sub_u32 s19, s{W}, {d+1}")
        a.e("s_and_b32 s19, s19, 3")
        a.e("s_mul_i32 s19, s19, 6144")
        a.e(f"s_add_u32 s19, s19, {GST+d*18432}")
        a.e(f"v_add_u32 v4, s19, v{AZ}")
        for k in range(6):
            a.e(f"ds_write_b128 v4, {vr(ACC+24*d+4*k,4)} offset:{k*1024}")
        a.e(f"s_branch G_donew{d}")
        a.label(f"G_skipw{d}")
        for k in range(24):
            a.e(f"v_mov_b32 v{32+k}, v{ACC+24*d+k}")
        a.label(f"G_donew{d}")
    a.e(f"s_mul_i32 s19, s{W}, 18432")
    a.e(f"s_add_u32 s19, s19, {GST}")
    a.e(f"v_add_u32 v5, s19, v{AZ}")
    gsync()
    for k in range(18):
        a.e(f"ds_read_b128 {vr(ACC+4*k,4)}, v5 offset:{k*1024}")
    a.e("s_waitcnt vmcnt(0)")
    a.e("v_lshlrev_b32 v28, 16, v28")
    a.e("s_waitcnt lgkmcnt(0)")
    for k in range(24):
        a.e(f"v_add_f32 v{32+k}, v{32+k}, v28")
        a.e(f"v_add_f32 v{ACC+k}, v{ACC+k}, v{ACC+24+k}")
    for k in range(24):
        a.e(f"v_add_f32 v{32+k}, v{32+k}, v{ACC+48+k}")
        a.e(f"v_add_f32 v{ACC+k}, v{ACC+k}, v{32+k}")
    for r in range(3):
        for i in range(4):
            a.e(f"v_lshlrev_b32 v4, 16, v{16+4*r+i}")
            a.e(f"v_and_b32 v5, s35, v{16+4*r+i}")
            a.e(f"v_mul_f32 v4, v4, v{ACC+8*r+2*i}")
            a.e(f"v_mul_f32 v5, v5, v{ACC+8*r+2*i+1}")
            a.e(f"v_cvt_pk_bf16_f32 v{32+4*r+i}, v4, v5")
        a.e(f"s_add_u32 s20, s22, {r}")
        a.e("s_cmp_ge_u32 s20, 43")
        a.e("s_cbranch_scc1 G2_skip")
        a.e(f"buffer_store_dwordx4 {vr(32+4*r,4)}, v{AZ}, s[12:15], s28 offen offset:{r*1024}")
    a.label("G2_skip")
    ht_mark(a, 4, W, 8)
    if not os.environ.get("NOK3PF"):
        a.e("s_load_dwordx2 s[24:25], s[0:1], 16")
        a.e("s_load_dwordx2 s[26:27], s[0:1], 56")
        a.e("s_load_dwordx2 s[28:29], s[0:1], 0")
        a.e("s_lshr_b32 s19, s2, 3")
        a.e("s_lshl_b32 s19, s19, 2")
        a.e(f"s_add_u32 s19, s19, s{W}")
        a.e("v_lshlrev_b32 v4, 7, v2")
        a.e("s_lshl_b32 s20, s19, 13")
        a.e("s_waitcnt lgkmcnt(0)")
        srd(a, 4, 26, 27, 688*1024)
        a.e("buffer_load_dword v5, v4, s[4:7], s20 offen")
        srd(a, 8, 24, 25, 512*1024)
        a.e("s_xor_b32 s20, s20, 0x80000")
        a.e("buffer_load_dword v6, v4, s[8:11], s20 offen")
        srd(a, 4, 28, 29, 2*MB)
        a.e("s_and_b32 s20, s2, 7")
        a.e("s_lshl_b32 s20, s20, 18")
        a.e("s_lshl_b32 s19, s19, 11")
        a.e("s_add_u32 s20, s20, s19")
        a.e("s_mov_b64 exec, 0xffff")
        a.e("buffer_load_dword v7, v4, s[4:7], s20 offen")
        a.e("s_mov_b64 exec, -1")
    stamp_flush(a, 7 if DIAG else 4, 30, 31, 16, 1, vt=4)
    a.e("s_endpgm")
```

```python
from common import *

def gen_out(a):
    name = "out_kernel"
    kernel_head(a, name)
    a.e("s_cmp_ge_u32 s2, 256")
    a.e("s_cbranch_scc1 O_exit")
    a.e("s_load_dwordx2 s[24:25], s[0:1], 16")
    a.e("s_load_dwordx4 s[36:39], s[0:1], 56")
    a.e("s_load_dwordx2 s[30:31], s[0:1], 80")
    a.e("s_load_dwordx2 s[28:29], s[0:1], 0")
    a.e("v_lshrrev_b32 v1, 6, v0")
    a.e("v_and_b32 v2, 63, v0")
    a.e("v_readfirstlane_b32 s16, v1")
    stamp_rt(a, 0); stamp(a, 1)
    ht_mark(a, 6, 16, 144)
    PRE = int(os.environ.get("OPRE", "3"))
    NB = PRE + 1
    ACC = 64; AF = 24; WF = [8, 16]; XR = 128
    assert AF + 8*NB <= ACC
    a.e("s_and_b32 s17, s2, 7")
    a.e("s_lshl_b32 s17, s17, 2")
    a.e("s_bfe_u32 s18, s2, 0x20003")
    a.e("s_or_b32 s17, s17, s18")
    a.e("s_lshr_b32 s18, s2, 5")
    a.e("v_bfe_u32 v3, v2, 4, 1")
    a.e("v_lshlrev_b32 v3, 2, v3")
    a.e("v_and_b32 v4, 7, v2")
    a.e("v_xor_b32 v3, v3, v4")
    a.e("v_lshlrev_b32 v3, 4, v3")
    a.e("v_lshrrev_b32 v4, 3, v2")
    a.e("v_lshl_add_u32 v3, v4, 10, v3")
    a.e("s_lshl_b32 s19, s18, 7")
    a.e("v_add_u32 v3, s19, v3")
    a.e("v_add_u32 v4, 8192-1024, v3")
    a.e("v_lshlrev_b32 v5, 4, v2")
    a.e(f"v_add_u32 v6, {75*1024}, v5")
    a.e("s_lshl_b32 s20, s16, 17")
    a.e(f"s_mul_i32 s21, s16, {11*16384}")
    a.e(f"s_mul_i32 s22, s17, {2*75*1024}")
    a.e("s_lshl_b32 s23, s16, 13")
    a.e("s_add_u32 s23, s23, s22")
    a.e(f"s_mul_i32 s26, s16, {11*1024}")
    a.e("s_add_u32 s26, s26, s22")
    a.e("s_add_u32 s26, s26, 32768")
    a.e(f"s_mul_i32 s27, s16, {19*2048}")
    a.e("s_waitcnt lgkmcnt(0)")
    srd(a, 4, 24, 25, 512*1024)
    srd(a, 8, 36, 37, 688*1024)
    a.e(f"s_add_u32 s12, s30, {WS_ACT}")
    a.e("s_addc_u32 s13, s31, 0")
    a.e("s_and_b32 s13, s13, 0xffff")
    a.e(f"s_mov_b32 s14, {ACT_BYTES}")
    a.e("s_mov_b32 s15, 0x00020000")
    UFIRST = bool(os.environ.get("UFIRST"))
    def issue(k):
        o = (k >= 11) if UFIRST else (k < 8)
        srdw = "s[4:7]" if o else "s[8:11]"
        sw = 20 if o else 21; sa = 23 if o else 26
        f = AF + 8*(k % NB)
        a.e(f"s_add_u32 m0, s27, {k*2048}")
        a.e(f"buffer_load_dwordx4 {vr(f,4)}, v5, s[12:15], s{sa} offen")
        a.e(f"buffer_load_dwordx4 v3, {srdw}, s{sw} offen lds")
        a.e(f"buffer_load_dwordx4 v4, {srdw}, s{sw} offen offset:1024 lds")
        a.e(f"buffer_load_dwordx4 {vr(f+4,4)}, v6, s[12:15], s{sa} offen")
        a.e(f"s_add_u32 s{sw}, s{sw}, 16384")
        a.e(f"s_add_u32 s{sa}, s{sa}, 1024")
    for k in range(PRE): issue(k)
    a.e("v_lshrrev_b32 v7, 5, v2")
    a.e("v_bfe_u32 v140, v2, 2, 2")
    a.e("v_lshl_add_u32 v141, v7, 2, v140")
    a.e("v_lshlrev_b32 v141, 7, v141")
    a.e("v_bfe_u32 v142, v2, 4, 1")
    a.e("v_lshlrev_b32 v142, 1, v142")
    a.e("v_bfe_u32 v143, v2, 1, 1")
    a.e("v_add_u32 v142, v142, v143")
    a.e("v_lshrrev_b32 v140, 1, v140")
    a.e("v_lshlrev_b32 v140, 2, v140")
    a.e("v_xor_b32 v142, v142, v140")
    a.e("v_lshl_add_u32 v141, v142, 4, v141")
    a.e("v_and_b32 v143, 1, v2")
    a.e("v_lshl_add_u32 v141, v143, 3, v141")
    a.e("v_add_u32 v141, s27, v141")
    a.e("v_xor_b32 v142, 64, v141")
    a.e("v_and_b32 v140, 31, v2")
    a.e("s_lshl_b32 s32, s17, 6")
    a.e("s_lshr_b32 s33, s16, 1")
    a.e("s_lshl_b32 s33, s33, 5")
    a.e("s_add_u32 s32, s32, s33")
    a.e("s_lshl_b32 s32, s32, 10")
    a.e("s_and_b32 s33, s16, 1")
    a.e("s_lshl_b32 s33, s33, 6")
    a.e("s_add_u32 s32, s32, s33")
    a.e("s_add_u32 s32, s32, s19")
    a.e("v_lshlrev_b32 v140, 10, v140")
    a.e("v_lshl_add_u32 v140, v7, 4, v140")
    srd(a, 40, 28, 29, 2*MB)
    srd(a, 44, 38, 39, 2*MB)
    stamp(a, 2)
    def wreads(k, buf):
        for b in range(2):
            for p in range(2):
                a.e(f"ds_read_b64_tr_b16 {vr(WF[buf]+4*b+2*p,2)}, v{141+b} offset:{k*2048+p*1024}")
    issued = PRE
    extra = [0]
    def wait_step(k):
        a.e(f"s_waitcnt vmcnt({4*(issued-1-k) + extra[0]})")
    wait_step(0)
    wreads(0, 0)
    for k in range(19):
        if issued < 19:
            issue(issued); issued += 1
            if issued == 19:
                for j in range(2):
                    a.e(f"buffer_load_dwordx4 {vr(XR+4*j,4)}, v140, s[40:43], s32 offen offset:{32*j}")
                extra[0] = 2
        if k + 1 < 19:
            wait_step(k + 1)
            wreads(k + 1, (k + 1) & 1)
            a.e("s_waitcnt lgkmcnt(4)")
        else:
            a.e("s_waitcnt lgkmcnt(0)")
        for aa in range(2):
            for b in range(2):
                d = ACC + 16*(2*aa + b)
                mfma32(a, d, WF[k & 1]+4*b, AF+8*(k % NB)+4*aa, d if k else "0")
    stamp(a, 3)
    a.e("v_add_u32 v6, s27, v5")
    a.e("s_lshl_b32 s21, s16, 12")
    a.e("v_add_u32 v3, s21, v5")
    a.e("s_mov_b32 s21, 0xffff0000")
    a.e("s_nop 7")
    for d in range(4):
        a.e(f"s_cmp_eq_u32 s16, {d}")
        a.e(f"s_cbranch_scc1 O_own{d}")
        for k in range(4):
            a.e(f"ds_write_b128 v6, {vr(ACC+16*d+4*k,4)} offset:{(4*d+k)*1024}")
        a.e(f"s_branch O_nx{d}")
        a.label(f"O_own{d}")
        for k in range(16):
            a.e(f"v_mov_b32 v{8+k}, v{ACC+16*d+k}")
        a.label(f"O_nx{d}")
    a.e("s_waitcnt lgkmcnt(0)")
    a.e("s_barrier")
    for j in range(1, 4):
        a.e(f"s_add_u32 s22, s16, {j}")
        a.e("s_and_b32 s22, s22, 3")
        a.e(f"s_mul_i32 s22, s22, {19*2048}")
        a.e("v_add_u32 v6, s22, v3")
        for k in range(4):
            a.e(f"ds_read_b128 {vr(ACC+16*(j-1)+4*k,4)}, v6 offset:{k*1024}")
    a.e("s_waitcnt vmcnt(0)")
    for j in range(2):
        a.e(f"v_permlane32_swap_b32 v{XR+4*j}, v{XR+4*j+2}")
        a.e(f"v_permlane32_swap_b32 v{XR+4*j+1}, v{XR+4*j+3}")
    for i in range(8):
        a.e(f"v_lshlrev_b32 v{24+2*i}, 16, v{XR+i}")
        a.e(f"v_and_b32 v{25+2*i}, s21, v{XR+i}")
    for i in range(8):
        a.e(f"v_pk_add_f32 {vr(8+2*i,2)}, {vr(8+2*i,2)}, {vr(24+2*i,2)}")
    for j in range(3):
        a.e(f"s_waitcnt lgkmcnt({8-4*j})")
        for i in range(8):
            a.e(f"v_pk_add_f32 {vr(8+2*i,2)}, {vr(8+2*i,2)}, {vr(ACC+16*j+2*i,2)}")
    for i in range(8):
        a.e(f"v_cvt_pk_bf16_f32 v{XR+i}, v{8+2*i}, v{9+2*i}")
    a.e("s_nop 1")
    for j in range(2):
        a.e(f"v_permlane32_swap_b32 v{XR+4*j}, v{XR+4*j+2}")
        a.e(f"v_permlane32_swap_b32 v{XR+4*j+1}, v{XR+4*j+3}")
    for j in range(2):
        a.e(f"buffer_store_dwordx4 {vr(XR+4*j,4)}, v140, s[44:47], s32 offen offset:{32*j}")
    ht_mark(a, 7, 16, 144)
    ht_final(a, 16, 144)
    stamp_flush(a, 4, 30, 31, 16, 3, vt=144)
    a.label("O_exit")
    a.e("s_endpgm")
    return name, kernel_desc(name, 152, 102 if (STAMP or HT) else 56), f"; @launch kernel={name} grid=(256,1,1) block=(256,1,1) lds={4*19*2048}"
```
